```python
import torch

def _softmax(x, axis=-1):
    return torch.softmax(x, dim=axis)

def _gelu(x):
    return torch.nn.functional.gelu(x, approximate='tanh')

def _silu(x):
    return torch.nn.functional.silu(x)

def _sigmoid(x):
    return torch.sigmoid(x)

def _layernorm(x, axis=-1, eps=1e-05):
    m = x.mean(dim=axis, keepdim=True)
    v = x.var(dim=axis, keepdim=True, unbiased=False)
    return (x - m) / torch.sqrt(v + eps)

def _scatter_add(tgt, idx, src, axis=0):
    return tgt.clone().index_add_(axis, idx, src)

def _segment_sum(src, seg, n):
    out = torch.zeros((n,) + src.shape[1:], dtype=src.dtype)
    return out.index_add_(0, seg, src)

def _pad(x, pw):
    flat = tuple((v for pair in reversed(pw) for v in pair))
    return torch.nn.functional.pad(x, flat)
kernel_name = 'adaLN_cond__sliding_block_cached__dense_activation_silu__decode'

def setup_inputs():

    _w = lambda a: (lambda t: t.to(torch.bfloat16) if t.is_floating_point() else t)(torch.as_tensor(a))

    def _A_setup():
        B, Sq, D = (2, 1, 448)
        Hq, Hkv, Sk, Dh = (16, 8, 8192, 256)
        assert Hq % Hkv == 0, (Hq, Hkv)
        return {'x': _w((lambda *s: torch.randn(*s, dtype=torch.bfloat16) * 0.1)(B, Sq, D)), 'k_cache': _w((lambda *s: torch.randn(*s, dtype=torch.bfloat16) * 0.8)(B, Hkv, Sk, Dh)), 'v_cache': _w((lambda *s: torch.randn(*s, dtype=torch.bfloat16) * 3.2)(B, Hkv, Sk, Dh)), 'wq': _w((lambda *s: torch.randn(*s, dtype=torch.bfloat16) * 0.8)(D, Hq * Dh) * D ** (-0.5)), 'wo': _w((lambda *s: torch.randn(*s, dtype=torch.bfloat16) * 3.2)(Hq * Dh, D) * (Hq * Dh) ** (-0.5))}
    _A_in = _A_setup()

    def _B_setup():
        B, S, D, F = (2, 1, 448, 1792)
        return {'x': _w((lambda *s: torch.randn(*s, dtype=torch.bfloat16) * 0.1)(B, S, D)), 'w1': _w((lambda *s: torch.randn(*s, dtype=torch.bfloat16) * 3.2)(D, F) * D ** (-0.5)), 'w2': _w((lambda *s: torch.randn(*s, dtype=torch.bfloat16) * 3.2)(F, D) * F ** (-0.5))}
    _B_in = _B_setup()
    return {'A_x': _A_in['x'], 'A_k_cache': _A_in['k_cache'], 'A_v_cache': _A_in['v_cache'], 'A_wq': _A_in['wq'], 'A_wo': _A_in['wo'], 'B_x': _B_in['x'], 'B_w1': _B_in['w1'], 'B_w2': _B_in['w2'], 'c': _w((lambda *s: torch.randn(*s, dtype=torch.bfloat16) * 0.2)(2, 448) * 8.0), 'w_mod': _w((lambda *s: torch.randn(*s, dtype=torch.bfloat16) * 0.2)(448, 6 * 448) * 448 ** (-0.5) * 8.0)}

def reference(A_x, A_k_cache, A_v_cache, A_wq, A_wo, B_x, B_w1, B_w2, c, w_mod):

    def _A_ref(x, k_cache, v_cache, wq, wo):
        B, Sq, D = x.shape
        Hq, Dh = (16, 256)
        Hkv, Sk = (k_cache.shape[1], k_cache.shape[2])
        W = min(4096, max(256, Sk // 4))
        rep = Hq // Hkv
        q = (lambda x, *d: x.permute(*d))((x @ wq).reshape(B, Sq, Hq, Dh), 0, 2, 1, 3)
        k = (lambda x, n, axis: torch.repeat_interleave(x, n, dim=axis))(k_cache[:, :, Sk - W:, :], rep, axis=1)
        v = (lambda x, n, axis: torch.repeat_interleave(x, n, dim=axis))(v_cache[:, :, Sk - W:, :], rep, axis=1)
        scores = torch.einsum('bhqd,bhkd->bhqk', q, k) * Dh ** (-0.5)
        p = _softmax(scores, axis=-1)
        o = torch.einsum('bhqk,bhkd->bhqd', p, v)
        return (lambda x, *d: x.permute(*d))(o, 0, 2, 1, 3).reshape(B, Sq, Hq * Dh) @ wo

    def _B_ref(x, w1, w2):
        h = torch.einsum('bsd,df->bsf', x, w1)
        h = _silu(h)
        out = torch.einsum('bsf,fd->bsd', h, w2)
        return out
    x = A_x
    mod = (_silu(c) @ w_mod).reshape(c.shape[0], 6, 1, -1)
    sa, ca, ga, sb, cb, gb = (mod[:, 0].clone(), mod[:, 1].clone(), mod[:, 2].clone(), mod[:, 3].clone(), mod[:, 4].clone(), mod[:, 5].clone())
    h = _layernorm(x, axis=-1) * (1 + ca) + sa
    x = x + ga * _A_ref(h, A_k_cache, A_v_cache, A_wq, A_wo)
    h = _layernorm(x, axis=-1) * (1 + cb) + sb
    x = x + gb * _B_ref(h, B_w1, B_w2)
    return x
```

```python
NAME = "adaLN_cond__sliding_block_cached__dense_activation_silu__decode"
HEADER_COMMENT = open("cdna_kernels/" + NAME + ".s.ref").read().split("; Override launch")[0]

class Asm:
    def __init__(self):
        self.lines = []
        self.nlab = 0
    def __call__(self, s):
        for l in s.strip("\n").split("\n"):
            self.lines.append(l if l.strip().endswith(":") else "    " + l.strip())
    def label(self, name):
        self.lines.append(name + ":")
    def newlabel(self, p="L"):
        self.nlab += 1
        return f"{p}_{self.nlab}"
    def text(self):
        return "\n".join(self.lines) + "\n"

def wrap(body, grid=256, block=512, lds=0, vgpr=256, sgpr=102, accum=None, name=NAME + "_kernel"):
    if accum is None:
        accum = (vgpr + 3) // 4 * 4
    return f"""{HEADER_COMMENT}; @launch grid=({grid},1,1) block=({block},1,1) lds={lds}
.amdgcn_target "amdgcn-amd-amdhsa--gfx950"
.text
.globl {name}
.p2align 8
.type {name},@function
{name}:
{body}
.section .rodata,"a"
.p2align 6
.amdhsa_kernel {name}
  .amdhsa_next_free_vgpr {vgpr}
  .amdhsa_next_free_sgpr {sgpr}
  .amdhsa_accum_offset {accum}
  .amdhsa_group_segment_fixed_size 0
  .amdhsa_kernarg_size 104
  .amdhsa_user_sgpr_count 2
  .amdhsa_user_sgpr_kernarg_segment_ptr 1
  .amdhsa_system_sgpr_workgroup_id_x 1
.end_amdhsa_kernel
"""
```

```python
import sys, struct
from asmlib import *

class Cfg:
    POL = "nt"
    STAMPS = False
    DRY = True
    TMO = 200000
    LOCAL = True
    DK = 8
    DK1 = 2
    NK1 = 4
    NOKV = False
    SWAP = False
    FINE = False
    MTHR = True
    NP = 2
    NQT = 6
    DV = 16

LOG2E = 1.4426950408889634
def f32(x): return "0x%08x" % struct.unpack("<I", struct.pack("<f", x))[0]

EPOCH = 0
X1 = 0x1000
X0L = 0x10000
XMU = 0x100000
XID = 0x5000
X2 = 0x100000
ML = 0x18000
X4B = 0x1c000
XST = 0x1e000
X4A = 0x20000
X5 = 0x60000
X3 = 0x80000
STAMP_OFF = 0x8000000
OOB = 0x40000000

P_X, P_K, P_V, P_WQ, P_WO, P_BX, P_W1, P_W2 = 64, 66, 68, 70, 72, 74, 76, 78
P_C, P_WM, P_OUT, P_DBG, P_WS = 80, 82, 84, 86, 88
S_TAG16, S_TAG8, S_EP, S_TMO, S_LOC = 90, 91, 92, 93, 94

NJ = 12; KSLOT = 3; WR = 128

def SR(k): return 40 + 2 * k if k < 10 else 96 + 2 * (k - 10)

def gen(cfg):
    POL = cfg.POL
    a = Asm()
    MF = "v_mfma_f32_16x16x32_bf16"

    def srd(d, p, nbytes):
        a(f"s_mov_b32 s{d}, s{p}\ns_and_b32 s{d+1}, s{p+1}, 0xffff\ns_mov_b32 s{d+2}, {nbytes}\ns_mov_b32 s{d+3}, 0x20000")
    def stamp(k):
        if cfg.STAMPS: a(f"s_memrealtime s[{SR(k)}:{SR(k)+1}]")
    def nop(n):
        if n > 0: a(f"s_nop {n-1}")
    def barrier():
        if cfg.DRY:
            l = a.newlabel("L_nb"); a(f"s_cbranch_execz {l}\ns_barrier"); a.label(l)
        else:
            a("s_barrier")
    class vmem:
        def __enter__(s):
            if cfg.DRY:
                s.l = a.newlabel("L_nm"); a(f"s_cbranch_execz {s.l}")
        def __exit__(s, *e):
            if cfg.DRY: a.label(s.l)
    class only:
        def __init__(s, op, sreg, val): s.c = (op, sreg, val)
        def __enter__(s):
            s.l = a.newlabel("L_if"); op, r, v = s.c
            a(f"s_cmp_{op}_u32 s{r}, {v}\ns_cbranch_scc0 {s.l}")
        def __exit__(s, *e): a.label(s.l)
    def rnd2(x, y, t):
        a(f"v_cvt_pk_bf16_f32 v{t}, v{x}, v{y}\nv_lshlrev_b32 v{x}, 16, v{t}\nv_and_b32 v{y}, 0xffff0000, v{t}")
    def rnd1(x):
        a(f"v_cvt_pk_bf16_f32 v{x}, v{x}, v{x}\nv_and_b32 v{x}, 0xffff0000, v{x}")
    def epoch_load():
        a(f"s_load_dword s{S_EP}, s[{P_WS}:{P_WS+1}], {EPOCH}")
    def tags_ready():
        a(f"""s_waitcnt lgkmcnt(0)
        s_add_u32 s{S_EP}, s{S_EP}, 1
        s_and_b32 s{S_TAG8}, s{S_EP}, 0x7f
        s_or_b32 s{S_TAG8}, s{S_TAG8}, 0x80
        s_lshl_b32 s{S_TAG16}, s{S_EP}, 1
        s_and_b32 s{S_TAG16}, s{S_TAG16}, 0x7f00
        s_or_b32 s{S_TAG16}, s{S_TAG16}, 0x8000
        s_or_b32 s{S_TAG16}, s{S_TAG16}, s{S_TAG8}""")
    def poll_tail(loop):
        done = a.newlabel("L_pd")
        a(f"s_cbranch_vccz {done}\ns_sub_u32 s{S_TMO}, s{S_TMO}, 1\ns_cbranch_scc0 {loop}")
        a.label(done)
    def tmo_init(mult=1):
        a(f"s_mov_b32 s{S_TMO}, {cfg.TMO * mult}")
    def msad_check(regs, tagreg, t0, t1):
        first = regs[0::2]; second = regs[1::2]
        for i, r in enumerate(first):
            a(f"v_msad_u8 v{t0}, v{r}, v{tagreg}, {'0' if i == 0 else 'v%d' % t0}")
            if i < len(second):
                a(f"v_msad_u8 v{t1}, v{second[i]}, v{tagreg}, {'0' if i == 0 else 'v%d' % t1}")
        if second: a(f"v_or_b32 v{t0}, v{t0}, v{t1}")
        a(f"v_cmp_ne_u32 vcc, 0, v{t0}")
    def rowsum(regs, op="v_add_f32", steps=(8, 4, 2, 1)):
        for s in steps:
            if len(regs) < 3: nop(3 - len(regs))
            for r in regs:
                a(f"{op}_dpp v{r}, v{r}, v{r} row_ror:{s} row_mask:0xf bank_mask:0xf")
    def xrow(regs, tmps, op="v_add_f32", which=(16, 32)):
        for w in which:
            for r, t in zip(regs, tmps): a(f"v_mov_b32 v{t}, v{r}")
            nop(max(1, 3 - len(regs)) if len(regs) < 3 else 1)
            for r, t in zip(regs, tmps): a(f"v_permlane{w}_swap_b32 v{r}, v{t}")
            nop(1)
            for r, t in zip(regs, tmps): a(f"{op} v{r}, v{r}, v{t}")
    def end_wave():
        a("s_branch L_stamps" if cfg.STAMPS else "s_endpgm")
    def dry_begin(name):
        a("s_mov_b64 exec, 0" if cfg.DRY else f"s_branch {name}_mid")
        a.label(name + "_top")
    def dry_mid(name):
        a(f"s_cbranch_execnz {name}_done" if cfg.DRY else f"s_branch {name}_done")
        a.label(name + "_mid")
        a("s_mov_b64 exec, -1")
    def dry_end(name):
        a(f"s_branch {name}_top")
        a.label(name + "_done")
    def lds_wait(vaddr, off, target, vt):
        l = a.newlabel("L_lw")
        tmo_init(8)
        a.label(l)
        a(f"ds_read_b32 v{vt}, v{vaddr} offset:{off}\ns_waitcnt lgkmcnt(0)\nv_cmp_gt_u32 vcc, {target}, v{vt}")
        poll_tail(l)
    def lds_signal(vaddr_lane0, off, vone):
        a(f"s_waitcnt lgkmcnt(0)\nds_add_u32 v{vaddr_lane0}, v{vone} offset:{off}")
    def silu(regs, tmps):
        for r, t in zip(regs, tmps): a(f"v_mul_f32 v{t}, {f32(-LOG2E)}, v{r}")
        for r, t in zip(regs, tmps): a(f"v_exp_f32 v{t}, v{t}")
        for r, t in zip(regs, tmps): a(f"v_add_f32 v{t}, 1.0, v{t}")
        for r, t in zip(regs, tmps): a(f"v_rcp_f32 v{t}, v{t}")
        for r, t in zip(regs, tmps): a(f"v_mul_f32 v{r}, v{r}, v{t}")
    def strip_voff(vd, vt, row_stride, stmp, par_sgpr):
        a(f"v_lshrrev_b32 v{vd}, 3, v0")
        a(f"v_and_b32 v{vt}, 2, v{vd}")
        a(f"v_xor_b32 v{vt}, v{vt}, v0\nv_and_b32 v{vt}, 7, v{vt}")
        a(f"s_mov_b32 s{stmp}, {row_stride}\nv_mul_lo_u32 v{vd}, v{vd}, s{stmp}")
        a(f"v_lshl_add_u32 v{vd}, v{vt}, 4, v{vd}")
        if par_sgpr is None:
            a(f"v_xor_b32 v{vd+1}, 64, v{vd}")
        else:
            a(f"s_lshl_b32 s{stmp}, s{par_sgpr}, 6\nv_xor_b32 v{vd}, s{stmp}, v{vd}")
    def tr_base_sw(vd, vt, tile_sgpr, stmp, lds_base):
        a(f"v_lshrrev_b32 v{vt}, 2, v1\nv_lshl_add_u32 v{vd}, v2, 3, v{vt}\nv_lshlrev_b32 v{vd}, 7, v{vd}")
        a(f"v_and_b32 v{vt}, 2, v{vt}")
        a(f"v_and_b32 v{vd+1}, 1, v2\nv_lshl_add_u32 v{vt}, v{vd+1}, 2, v{vt}")
        a(f"v_bfe_u32 v{vd+1}, v1, 1, 1\ns_lshl_b32 s{stmp}, s{tile_sgpr}, 1\nv_add_u32 v{vd+1}, s{stmp}, v{vd+1}")
        a(f"v_xor_b32 v{vt}, v{vt}, v{vd+1}\nv_lshl_add_u32 v{vd}, v{vt}, 4, v{vd}")
        a(f"v_and_b32 v{vt}, 1, v1\nv_lshl_add_u32 v{vd}, v{vt}, 3, v{vd}")
        if lds_base: a(f"v_add_u32 v{vd}, {lds_base}, v{vd}")
    def tr_base(vd, rowbytes, vt):
        a(f"v_lshrrev_b32 v{vt}, 2, v1\nv_lshl_add_u32 v{vt}, v2, 3, v{vt}")
        a(f"v_mul_u32_u24 v{vd}, {rowbytes}, v{vt}")
        a(f"v_and_b32 v{vt}, 3, v1\nv_lshl_add_u32 v{vd}, v{vt}, 3, v{vd}")
    def tr_frag(dst, vaddr, vaddr_hi, off, rowbytes):
        for sub in range(2):
            o = off + sub * 4 * rowbytes
            if o > 65535: a(f"ds_read_b64_tr_b16 v[{dst+2*sub}:{dst+2*sub+1}], v{vaddr_hi} offset:{o - 65536}")
            else: a(f"ds_read_b64_tr_b16 v[{dst+2*sub}:{dst+2*sub+1}], v{vaddr} offset:{o}")
    def dma_list(srdreg, voff, gbase_sgpr, lbase_sgpr, items, stmp):
        for (goff, loff) in items:
            a(f"s_add_u32 m0, s{lbase_sgpr}, {loff}")
            a(f"s_add_u32 s{stmp}, s{gbase_sgpr}, {goff}")
            a(f"buffer_load_dwordx4 v{voff}, s[{srdreg}:{srdreg+3}], s{stmp} offen {POL} lds")
    def mask_n2(vaddr, voob):
        a(f"v_cmp_lt_u32 vcc, 1, v1\ns_nop 1\nv_cndmask_b32 v{vaddr}, v{vaddr}, v{voob}, vcc")

    NQT = cfg.NQT
    NTA = 128 - 2 * NQT
    TB = NTA // 10; NBIG = NTA % 10
    TMAX = TB + (1 if NBIG else 0)
    assert TMAX <= 4 * KSLOT
    A_Q = KSLOT * 4 * 8192
    A_MX = A_Q + 1024
    A_CNT = A_MX + 256
    A_DUM = A_CNT + 256
    Q_W = 0; Q_H = 114688 + 8192
    WF = 128; HF = 64; G = 40
    S_R0 = 0; S_R1 = 57344
    S_O = 114688; S_H1 = S_O + 512; S_G = S_O + 1024; S_SC = S_G + 4096
    X3SZ = 2 * NJ * WR * 4
    def std_recip(mean, var, t):
        rnd2(mean, var, t)
        a(f"v_add_f32 v{var}, {f32(1e-5)}, v{var}"); rnd1(var)
        a(f"v_sqrt_f32 v{var}, v{var}\ns_nop 0"); rnd1(var)
        a(f"v_rcp_f32 v{var}, v{var}\ns_nop 0")
    def id_poll(name, n):
        a(f"v_min_u32 v20, {n-1}, v0\nv_lshlrev_b32 v20, 4, v20\nv_add_u32 v20, {XID}, v20")
        tmo_init()
        a.label(name)
        a(f"buffer_load_dwordx4 v[{G}:{G+3}], v20, s[4:7], 0 offen sc1\ns_waitcnt vmcnt(0)")
        msad_check([G, G+1, G+2, G+3], 31, 32, 33)
        poll_tail(name)

    a("""
    s_cmp_ge_u32 s2, 256
    s_cbranch_scc1 L_exit
    s_load_dwordx16 s[64:79], s[0:1], 0
    s_load_dwordx8 s[80:87], s[0:1], 64
    s_load_dwordx2 s[88:89], s[0:1], 96
    """)
    if cfg.STAMPS:
        for k in range(1, 12): a(f"s_mov_b64 s[{SR(k)}:{SR(k)+1}], 0")
        stamp(0)
    a(f"""
    v_lshrrev_b32 v1, 6, v0
    v_and_b32 v0, 63, v0
    s_and_b32 s25, s2, 7
    v_readfirstlane_b32 s3, v1
    v_and_b32 v1, 15, v0
    v_lshrrev_b32 v2, 4, v0
    s_lshr_b32 s24, s2, 3
    v_lshrrev_b32 v24, 3, v0
    v_and_b32 v26, 2, v24
    v_xor_b32 v26, v26, v0
    v_and_b32 v26, 7, v26
    v_lshlrev_b32 v26, 4, v26
    s_and_b32 s30, s3, 1
    s_lshl_b32 s32, s30, 6
    v_xor_b32 v26, s32, v26
    s_lshl_b32 s33, s3, 10
    v_lshlrev_b32 v3, 4, v0
    v_mov_b32 v9, {OOB}
    v_cmp_gt_u32 vcc, 56, v0
    s_cmp_lg_u32 s25, 0
    s_cbranch_scc1 L_notL
    """)
    a(f"""
    s_cmp_ge_u32 s24, 28
    s_cbranch_scc1 L_exit
    v_cndmask_b32 v11, v9, v3, vcc
    s_cmp_ge_u32 s24, 14
    s_cselect_b32 s28, 1, 0
    s_mul_i32 s29, s28, 14
    s_sub_u32 s29, s24, s29
    s_lshl_b32 s31, s29, 7
    s_mul_i32 s32, s28, {224*5376}
    s_add_u32 s31, s31, s32
    s_mul_i32 s32, s3, {8*5376}
    s_add_u32 s31, s31, s32
    s_movk_i32 s32, 5376
    v_mul_lo_u32 v25, v24, s32
    v_add_u32 v25, v25, v26
    s_mul_i32 s34, s30, 896
    s_mov_b32 s10, 2408448
    s_mov_b32 s11, 0x20000
    s_mov_b32 s14, 1792
    s_mov_b32 s15, 0x20000
    s_waitcnt lgkmcnt(0)
    s_mov_b32 s8, s{P_WM}
    s_and_b32 s9, s{P_WM+1}, 0xffff
    s_mov_b32 s12, s{P_C}
    s_and_b32 s13, s{P_C+1}, 0xffff
    buffer_load_dwordx4 v[12:15], v11, s[12:15], s34 offen
    """)
    dma_list(8, 25, 31, 33, [(i * 64 * 5376, S_R0 + i * 8192) for i in range(3)], 32)
    with only("lt", 3, 4):
        dma_list(8, 25, 31, 33, [(3 * 64 * 5376, S_R0 + 3 * 8192)], 32)
    a("s_branch L_roleL")
    a.label("L_notL")
    a(f"""
    s_mul_i32 s24, s24, 7
    s_add_u32 s24, s24, s25
    s_sub_u32 s24, s24, 1
    s_mov_b32 s39, 0
    s_cmp_ge_u32 s24, 64
    s_cbranch_scc1 L_A_nm
    """)
    a(f"""
    s_and_b32 s36, s24, 31
    s_lshr_b32 s39, s24, 5
    s_and_b32 s27, s36, 3
    s_lshl_b32 s32, s39, 2
    s_add_u32 s27, s27, s32
    s_and_b32 s38, s27, 1
    s_lshr_b32 s27, s27, 1
    s_and_b32 s37, s36, 28
    s_add_u32 s37, s37, s27
    s_lshl_b32 s35, s37, 8
    s_mul_i32 s32, s38, {224*8192}
    s_add_u32 s35, s35, s32
    s_lshl_b32 s32, s3, 15
    s_add_u32 s35, s35, s32
    v_lshlrev_b32 v24, 1, v2
    v_xor_b32 v24, v24, v1
    s_and_b32 s32, s3, 2
    s_lshl_b32 s32, s32, 2
    v_xor_b32 v24, s32, v24
    v_lshlrev_b32 v24, 4, v24
    v_lshl_add_u32 v24, v2, 13, v24
    s_mov_b32 s10, 3670016
    s_mov_b32 s11, 0x20000
    v_cndmask_b32 v31, v9, v3, vcc
    v_cndmask_b32 v39, 0, 1.0, vcc
    s_mul_i32 s32, s30, 896
    v_min_u32 v28, 55, v0
    v_lshlrev_b32 v28, 2, v28
    s_mul_i32 s34, s38, 224
    v_add_u32 v30, s34, v28
    v_lshlrev_b32 v30, 1, v30
    s_mov_b32 s18, 1792
    s_mov_b32 s19, 0x20000
    s_waitcnt lgkmcnt(0)
    s_mov_b32 s16, s{P_X}
    s_and_b32 s17, s{P_X+1}, 0xffff
    s_mov_b32 s8, s{P_WQ}
    s_and_b32 s9, s{P_WQ+1}, 0xffff
    buffer_load_dwordx4 v[16:19], v31, s[16:19], s32 offen
    buffer_load_dwordx2 v[20:21], v30, s[16:19], s32 offen
    """)
    srd(4, P_WS, 0x10000000)
    with only("eq", 39, 0):
        a(f"""
        v_mov_b32 v4, -1
        v_mov_b32 v5, -1
        v_mov_b32 v6, -1
        v_mov_b32 v7, -1
        v_lshlrev_b32 v15, 2, v0
        s_mul_i32 s28, s24, {X3SZ}
        s_add_u32 s28, s28, {X3}
        s_lshl_b32 s29, s24, 8
        s_add_u32 s29, s29, {ML}
        s_add_u32 s32, s33, s28
        buffer_store_dwordx4 v[4:7], v3, s[4:7], s32 offen sc1
        """)
        with only("lt", 3, X3SZ // 1024 - 8):
            a("s_add_u32 s32, s32, 8192\nbuffer_store_dwordx4 v[4:7], v3, s[4:7], s32 offen sc1")
        with only("eq", 3, 7):
            a("buffer_store_dword v4, v15, s[4:7], s29 offen sc1")
    dma_list(8, 24, 35, 33, [(i * 32 * 8192, Q_W + i * 8192) for i in range(7)], 32)
    a("s_branch L_roleQ")
    a.label("L_A_nm")
    a(f"""
    s_sub_u32 s24, s24, 64
    s_mul_i32 s26, s24, 6554
    s_lshr_b32 s26, s26, 16
    s_mul_i32 s27, s26, 10
    s_sub_u32 s27, s24, s27
    s_mul_i32 s28, s27, {TB}
    s_min_u32 s29, s27, {NBIG}
    s_add_u32 s28, s28, s29
    s_cmp_lt_u32 s27, {NBIG}
    s_cselect_b32 s29, {TB+1}, {TB}
    L_A_par:
    s_lshl_b32 s28, s28, 13
    s_lshl_b32 s32, s26, 22
    s_add_u32 s28, s28, s32
    s_add_u32 s28, s28, {6144*512}
    s_cmp_ge_u32 s3, 4
    s_cbranch_scc1 L_A_other
    v_lshrrev_b32 v3, 5, v0
    v_and_b32 v4, 31, v0
    v_xor_b32 v4, v4, v3
    v_lshlrev_b32 v4, 4, v4
    v_lshl_add_u32 v8, v3, 9, v4
    """)
    for kp in range(1, 8): a(f"v_xor_b32 v{8+kp}, {kp << 5}, v8")
    a(f"""s_lshl_b32 s36, s3, 13
    s_add_u32 s36, s36, s28
    s_mul_i32 s31, s3, {KSLOT*8192}
    s_waitcnt lgkmcnt(0)
    """)
    srd(12, P_K, 0x4000000)
    def k_issue(throttle, nslot):
        n = 0
        for tt in range(nslot):
            lab = a.newlabel("L_kskip")
            if tt: a(f"s_add_u32 s32, s3, {tt*4}\ns_cmp_ge_u32 s32, s29\ns_cbranch_scc1 {lab}")
            for hf in range(2):
                a(f"s_add_u32 m0, s31, {tt*8192 + hf*4096}")
                a(f"s_add_u32 s32, s36, {tt*4*8192 + hf*4096}")
                for k4 in range(4):
                    dk = cfg.DK1 if n < cfg.NK1 else cfg.DK
                    if throttle and n >= dk: a(f"s_waitcnt vmcnt({dk-1})")
                    if not cfg.NOKV: a(f"buffer_load_dwordx4 v{8 + hf*4 + k4}, s[12:15], s32 offen offset:{k4*1024} {POL} lds")
                    n += 1
            a.label(lab)
    with only("eq", 39, 1):
        k_issue(False, (NQT + 3) // 4)
        a("s_branch L_AK_post")
    k_issue(True, KSLOT)
    stamp(1)
    a("s_barrier")
    a.label("L_AK_post")
    srd(4, P_WS, 0x10000000)
    a(f"""
    s_mul_i32 s31, s3, {KSLOT*8192}
    v_xor_b32 v3, v1, v2
    v_lshlrev_b32 v3, 4, v3
    v_lshl_add_u32 v3, v1, 9, v3
    v_add_u32 v4, s31, v3
    v_xor_b32 v5, 64, v4
    v_xor_b32 v6, 0x80, v4
    v_xor_b32 v7, 0xc0, v4
    v_lshrrev_b32 v8, 3, v1
    v_lshlrev_b32 v9, 9, v8
    v_lshl_add_u32 v9, v2, 4, v9
    v_add_u32 v9, {A_Q}, v9
    s_lshl_b32 s32, s3, 4
    v_lshlrev_b32 v10, 6, v8
    v_lshl_add_u32 v11, v2, 2, v10
    v_add_u32 v11, s32, v11
    v_add_u32 v11, {A_MX}, v11
    v_add_u32 v10, {A_MX}, v10
    v_lshlrev_b32 v12, 4, v0
    v_add_u32 v12, s31, v12
    s_mov_b32 s33, {f32(LOG2E / 16.0)}
    v_mov_b32 v28, {A_CNT}
    v_cmp_eq_u32 vcc, 0, v0
    v_lshlrev_b32 v31, 2, v0
    v_add_u32 v31, {A_DUM}, v31
    v_cndmask_b32 v29, 0, 1, vcc
    v_cndmask_b32 v31, v31, v28, vcc
    v_bfe_u32 v14, v1, 1, 2
    v_and_b32 v15, 1, v1
    v_mov_b32 v16, 0xffff
    v_lshlrev_b32 v15, 4, v15
    v_lshlrev_b32 v15, v15, v16
    """)
    KF = 64; QF = 32; SC = 16; MK = 160; AO = 164
    a(f"v_and_b32 v14, 7, v1\nv_lshl_add_u32 v{MK}, v14, 1, v12")
    for j in range(4): a(f"v_mov_b32 v{AO+j}, 0")
    FPH = 256 // WR
    a(f"""
    s_lshr_b32 s34, s26, 3
    s_and_b32 s35, s26, 7
    s_lshl_b32 s35, s35, 1
    v_add_u32 v13, s35, v8
    v_mul_u32_u24 v13, {FPH}, v13
    v_add_u32 v13, v13, v2
    v_lshlrev_b32 v13, 1, v13
    v_add_u32 v13, s34, v13
    v_lshlrev_b32 v13, 4, v13
    v_add_u32 v13, s27, v13
    v_lshlrev_b32 v13, 3, v13
    v_add_u32 v13, {ML}, v13
    v_and_b32 v14, 7, v1
    v_cmp_ne_u32 vcc, 0, v14
    v_cmp_le_u32 s[36:37], {FPH}, v2
    s_or_b64 vcc, vcc, s[36:37]
    v_mov_b32 v14, {OOB}
    s_nop 0
    v_cndmask_b32 v13, v13, v14, vcc
    """)
    if cfg.DRY: a("s_cmp_eq_u32 s39, 1\ns_cbranch_scc1 L_AK_mid")
    dry_begin("L_AK")
    for tt in range(KSLOT):
        for r in range(4): a(f"v_mov_b32 v{SC+4*tt+r}, 0xff800000")
    lds_wait(28, 0, 1, 30)
    stamp(3)
    for i in range(8):
        a(f"ds_read_b128 v[{QF+4*i}:{QF+4*i+3}], v9 offset:{i*64}")
    for tt in range(KSLOT):
        lab = a.newlabel("L_qk")
        if tt: a(f"s_add_u32 s32, s3, {4*tt}\ns_cmp_ge_u32 s32, s29\ns_cbranch_scc1 {lab}")
        for i in range(8):
            if tt == 0: a(f"s_waitcnt lgkmcnt({7-i})")
            c = "0" if i == 0 else f"v[{SC+4*tt}:{SC+4*tt+3}]"
            a(f"{MF} v[{SC+4*tt}:{SC+4*tt+3}], v[{KF+tt*32+4*i}:{KF+tt*32+4*i+3}], v[{QF+4*i}:{QF+4*i+3}], {c}")
        a.label(lab)
    nop(8)
    T = 14
    for tt in range(KSLOT):
        rnd2(SC+4*tt, SC+4*tt+1, T); rnd2(SC+4*tt+2, SC+4*tt+3, T+1)
    regs = [SC + i for i in range(4 * KSLOT)]
    a(f"v_max3_f32 v{T}, v{regs[0]}, v{regs[1]}, v{regs[2]}\nv_max3_f32 v{T+1}, v{regs[3]}, v{regs[4]}, v{regs[5]}")
    a(f"v_max3_f32 v{T}, v{T}, v{regs[6]}, v{regs[7]}\nv_max3_f32 v{T+1}, v{T+1}, v{regs[8]}, v{regs[9]}")
    a(f"v_max3_f32 v{T}, v{T}, v{regs[10]}, v{regs[11]}\nv_max_f32 v{T}, v{T}, v{T+1}")
    a(f"ds_write_b32 v11, v{T}")
    lds_signal(31, 4, 29)
    lds_wait(28, 4, 4, 30)
    for i in range(4):
        a(f"ds_read_b128 v[{QF+4*i}:{QF+4*i+3}], v10 offset:{i*16}")
    a("s_waitcnt lgkmcnt(0)")
    a(f"v_max3_f32 v{T}, v{QF}, v{QF+1}, v{QF+2}\nv_max3_f32 v{T+1}, v{QF+3}, v{QF+4}, v{QF+5}")
    a(f"v_max3_f32 v{T}, v{T}, v{QF+6}, v{QF+7}\nv_max3_f32 v{T+1}, v{T+1}, v{QF+8}, v{QF+9}")
    a(f"v_max3_f32 v{T}, v{T}, v{QF+10}, v{QF+11}\nv_max3_f32 v{T+1}, v{T+1}, v{QF+12}, v{QF+13}")
    a(f"v_max3_f32 v{T}, v{T}, v{QF+14}, v{QF+15}\nv_max_f32 v{T}, v{T}, v{T+1}")
    a(f"v_mul_f32 v{QF+16}, s33, v{T}")
    for r in regs: a(f"v_fma_f32 v{r}, v{r}, s33, -v{QF+16}")
    for r in regs: a(f"v_exp_f32 v{r}, v{r}")
    for tt in range(KSLOT):
        a(f"v_cvt_pk_bf16_f32 v{QF+2*tt}, v{SC+4*tt}, v{SC+4*tt+1}\nv_cvt_pk_bf16_f32 v{QF+2*tt+1}, v{SC+4*tt+2}, v{SC+4*tt+3}")
        a(f"ds_write_b16 v{MK}, v{QF+2*tt} offset:{tt*8192}\nds_write_b16_d16_hi v{MK}, v{QF+2*tt} offset:{tt*8192+1024}")
        a(f"ds_write_b16 v{MK}, v{QF+2*tt+1} offset:{tt*8192+2048}\nds_write_b16_d16_hi v{MK}, v{QF+2*tt+1} offset:{tt*8192+3072}")
    a(f"v_add_f32 v{T}, v{regs[0]}, v{regs[1]}\nv_add_f32 v{T+1}, v{regs[2]}, v{regs[3]}")
    for i in range(4, len(regs), 2):
        a(f"v_add_f32 v{T}, v{T}, v{regs[i]}\nv_add_f32 v{T+1}, v{T+1}, v{regs[i+1]}")
    a(f"v_add_f32 v{T}, v{T}, v{T+1}")
    a(f"ds_write_b32 v11, v{T} offset:128")
    lds_signal(31, 8, 29)
    stamp(4)
    with only("eq", 3, 0):
        lds_wait(28, 8, 4, 30)
        for i in range(4):
            a(f"ds_read_b128 v[{QF+4*i}:{QF+4*i+3}], v10 offset:{128+i*16}")
        a("s_waitcnt lgkmcnt(0)")
        for i in range(8): a(f"v_add_f32 v{QF+i}, v{QF+i}, v{QF+8+i}")
        for i in range(4): a(f"v_add_f32 v{QF+i}, v{QF+i}, v{QF+4+i}")
        a(f"v_add_f32 v{QF}, v{QF}, v{QF+2}\nv_add_f32 v{QF+1}, v{QF+1}, v{QF+3}\nv_add_f32 v{QF+17}, v{QF}, v{QF+1}")
        with vmem():
            a(f"buffer_store_dwordx2 v[{QF+16}:{QF+17}], v13, s[4:7], 0 offen sc1")
    dry_mid("L_AK")
    a("s_waitcnt vmcnt(0)")
    stamp(2)
    for tt in range(KSLOT):
        for i in range(8):
            if cfg.NOKV:
                for r in range(4): a(f"v_mov_b32 v{KF+tt*32+4*i+r}, 0")
            else: a(f"ds_read_b128 v[{KF+tt*32+4*i}:{KF+tt*32+4*i+3}], v{4 + (i & 3)} offset:{tt*8192 + (i >> 2)*256}")
    a("s_waitcnt lgkmcnt(0)")
    for tt in range(KSLOT):
        for r in range(4): a(f"ds_write_b128 v12, v[{AO}:{AO+3}] offset:{tt*8192 + r*1024}")
    dry_end("L_AK")
    end_wave()

    a.label("L_A_other")
    a("s_waitcnt lgkmcnt(0)")
    a.label("L_A_other2")
    srd(4, P_WS, 0x10000000)
    a("s_cmp_ge_u32 s3, 6\ns_cbranch_scc1 L_A_poll")
    srd(8, P_V, 0x4000000)
    VD = 256 - TMAX * 16
    ACC = 8; NAO = 8; AOP = 16
    assert AOP + 4 * NAO <= VD
    a(f"""
    s_sub_u32 s30, s3, 4
    s_lshl_b32 s31, s30, 8
    s_add_u32 s28, s28, s31
    v_lshlrev_b32 v3, 11, v2
    v_lshl_add_u32 v3, v1, 4, v3
    v_lshlrev_b32 v4, 4, v0
    v_add_u32 v7, {2*KSLOT*8192}, v4
    v_mov_b32 v12, {A_CNT}
    s_lshr_b32 s34, s26, 3
    s_and_b32 s35, s26, 7
    s_lshl_b32 s35, s35, 9
    s_lshl_b32 s31, s30, 7
    s_add_u32 s35, s35, s31
    v_lshrrev_b32 v5, 1, v2
    v_lshlrev_b32 v5, 8, v5
    v_lshl_add_u32 v5, v1, 3, v5
    v_and_b32 v6, 1, v2
    v_lshl_add_u32 v5, v6, 2, v5
    v_add_u32 v5, s35, v5
    v_lshrrev_b32 v6, {WR.bit_length()-1}, v5
    v_and_b32 v5, {WR-1}, v5
    v_lshlrev_b32 v6, 1, v6
    v_add_u32 v6, s34, v6
    v_mul_u32_u24 v6, {NJ}, v6
    v_add_u32 v6, s27, v6
    v_mul_u32_u24 v6, {WR}, v6
    v_add_u32 v5, v5, v6
    v_lshlrev_b32 v5, 2, v5
    v_add_u32 v5, {X3}, v5
    """)
    order = list(range(TMAX - 1, -1, -1))
    NL = 4 * TMAX
    def aop_read(t, r):
        w, tt = t & 3, t >> 2
        off = ((w & 1) * KSLOT + tt) * 8192 + r * 1024
        slot = (t * 4 + r) % NAO
        a(f"ds_read_b128 v[{AOP+4*slot}:{AOP+4*slot+3}], v{4 if w < 2 else 7} offset:{off}")
    a("s_cmp_eq_u32 s39, 1\ns_cbranch_scc1 L_AV_post")
    dry_begin("L_AV")
    for r in range(4): a(f"v_mov_b32 v{ACC+r}, 0")
    lds_wait(12, 8, 4, 13)
    stamp(3)
    entry = {}
    for nt in sorted({TB, TMAX, NQT}, reverse=True):
        entry[nt] = a.newlabel("L_pv")
    nts = sorted(entry.keys(), reverse=True)
    for nt in nts[1:]:
        with only("eq", 29, nt):
            for r in range(4): aop_read(nt - 1, r)
            a(f"s_branch {entry[nt]}")
    for r in range(4): aop_read(TMAX - 1, r)
    for oi, t in enumerate(order):
        if t + 1 in entry: a.label(entry[t + 1])
        if t > 0:
            for r in range(4): aop_read(t - 1, r)
        for r in range(4):
            remaining = t * 4 + (3 - r)
            lg = (4 if t > 0 else 0) + (3 - r)
            if remaining < cfg.DV: a(f"s_waitcnt vmcnt({remaining}) lgkmcnt({lg})")
            else: a(f"s_waitcnt lgkmcnt({lg})")
            vd = VD + t * 16 + r * 4
            slot = (t * 4 + r) % NAO
            a(f"{MF} v[{ACC}:{ACC+3}], v[{AOP+4*slot}:{AOP+4*slot+3}], v[{vd}:{vd+3}], v[{ACC}:{ACC+3}]")
    stamp(4)
    nop(8)
    with vmem():
        a(f"buffer_store_dwordx4 v[{ACC}:{ACC+3}], v5, s[4:7], 0 offen sc1")
    dry_mid("L_AV")
    a("s_barrier")
    a.label("L_AV_post")
    stamp(1)
    n = 0
    for oi, t in enumerate(order):
        lab = None
        if t >= min(nts):
            lab = a.newlabel("L_vskip")
            a(f"s_cmp_le_u32 s29, {t}\ns_cbranch_scc1 {lab}")
        a(f"s_add_u32 s32, s28, {t*8192}")
        for r in range(4):
            vd = VD + t * 16 + r * 4
            if n >= cfg.DV: a(f"s_waitcnt vmcnt({cfg.DV-1})")
            if cfg.NOKV: a(f"v_mov_b32 v{vd}, 0\nv_mov_b32 v{vd+1}, 0\nv_mov_b32 v{vd+2}, 0\nv_mov_b32 v{vd+3}, 0")
            else: a(f"buffer_load_dwordx4 v[{vd}:{vd+3}], v3, s[8:11], s32 offen offset:{r*512} {POL}")
            n += 1
        if lab: a.label(lab)
    stamp(2)
    dry_end("L_AV")
    if cfg.STAMPS: a("s_waitcnt vmcnt(0)"); stamp(5)
    end_wave()

    a.label("L_A_poll")
    a("s_cmp_lg_u32 s3, 6\ns_cbranch_scc1 L_exit")
    with only("eq", 39, 0):
        epoch_load()
        tags_ready()
    a(f"""
    s_lshl_b32 s30, s26, 11
    s_add_u32 s30, s30, {X2}
    v_lshlrev_b32 v3, 4, v0
    v_lshlrev_b32 v4, 3, v0
    v_add_u32 v4, {A_Q}, v4
    v_mov_b32 v12, {A_CNT}
    v_mov_b32 v13, 1
    v_mov_b32 v5, s{S_TAG8}
    s_add_u32 s31, s30, 32768
    """)
    with only("eq", 39, 0):
        a("v_mov_b32 v8, 0\nv_mov_b32 v9, 0\nv_mov_b32 v10, 0\nv_mov_b32 v11, 0\nds_write_b128 v12, v[8:11]\ns_waitcnt lgkmcnt(0)\ns_barrier")
    tmo_init()
    NP = cfg.NP
    def qload(k):
        b0 = 16 + 16 * k
        a(f"buffer_load_dwordx4 v[{b0}:{b0+3}], v3, s[4:7], s30 offen sc1")
        a(f"buffer_load_dwordx4 v[{b0+4}:{b0+7}], v3, s[4:7], s30 offen offset:1024 sc1")
        a(f"buffer_load_dwordx4 v[{b0+8}:{b0+11}], v3, s[4:7], s31 offen sc1")
        a(f"buffer_load_dwordx4 v[{b0+12}:{b0+15}], v3, s[4:7], s31 offen offset:1024 sc1")
    for k in range(NP - 1):
        qload(k); a("s_sleep 8")
    a.label("L_qpoll")
    for k in range(NP):
        qload((k + NP - 1) % NP)
        a(f"s_waitcnt vmcnt({4*(NP-1)})")
        msad_check([16 + 16*k + i for i in range(16)], 5, 6, 7)
        a(f"s_cbranch_vccz L_qgot{k}")
        if NP > 1: a("s_sleep 5")
    a(f"s_sub_u32 s{S_TMO}, s{S_TMO}, 1\ns_cbranch_scc0 L_qpoll")
    for k in range(NP):
        a.label(f"L_qgot{k}")
        b0 = 16 + 16 * k
        for i in range(16): a(f"v_and_b32 v{b0+i}, 0xffffff00, v{b0+i}")
        for i in range(0, 8, 2): a(f"v_pk_add_f32 v[{b0+i}:{b0+i+1}], v[{b0+i}:{b0+i+1}], v[{b0+8+i}:{b0+9+i}]")
        for i in range(4): a(f"v_cvt_pk_bf16_f32 v{8+i}, v{b0+2*i}, v{b0+2*i+1}")
        if k < NP - 1: a("s_branch L_qwr")
    a.label("L_qwr")
    a("ds_write_b64 v4, v[8:9]\nds_write_b64 v4, v[10:11] offset:512\ns_waitcnt lgkmcnt(0)\nds_write_b32 v12, v13")
    stamp(4)
    end_wave()

    a.label("L_roleQ")
    stamp(1)
    epoch_load()
    a(f"""
    v_mov_b32 v29, 0xffffff00
    v_and_b32 v27, 1, v1
    v_lshlrev_b32 v27, 9, v27
    v_lshl_add_u32 v27, v2, 4, v27
    v_add_u32 v27, {Q_H}, v27
    s_lshl_b32 s32, s3, 6
    s_lshl_b32 s31, s37, 9
    s_add_u32 s32, s32, s31
    s_lshl_b32 s31, s38, 15
    s_add_u32 s32, s32, s31
    s_add_u32 s32, s32, {X2}
    v_lshlrev_b32 v26, 14, v1
    v_lshl_add_u32 v26, v2, 4, v26
    v_add_u32 v26, s32, v26
    v_lshrrev_b32 v38, 2, v1
    v_lshl_add_u32 v36, v2, 3, v38
    v_lshlrev_b32 v36, 8, v36
    v_lshlrev_b32 v38, 1, v38
    v_and_b32 v37, 1, v2
    v_lshl_add_u32 v38, v37, 3, v38
    v_bfe_u32 v37, v1, 1, 1
    s_lshl_b32 s32, s3, 1
    v_add_u32 v37, s32, v37
    v_xor_b32 v38, v38, v37
    v_lshl_add_u32 v36, v38, 4, v36
    v_and_b32 v38, 1, v1
    v_lshl_add_u32 v36, v38, 3, v36
    s_mul_i32 s32, s30, {896*4}
    s_add_u32 s32, s32, {X1}
    s_add_u32 s35, s32, {2*896*4}
    v_lshlrev_b32 v8, 1, v30
    s_lshl_b32 s34, s30, 9
    v_lshlrev_b32 v10, 1, v28
    v_add_u32 v10, s34, v10
    v_add_u32 v10, {Q_H}, v10
    """)
    mask_n2(26, 9)
    XN = 16
    with only("ge", 3, 6):
        a(f"""
        v_mov_b32 v12, {A_CNT}
        v_mov_b32 v4, 0
        v_mov_b32 v5, 0
        v_mov_b32 v6, 0
        v_mov_b32 v7, 0
        ds_write_b128 v12, v[4:7]
        s_waitcnt vmcnt(7)
        """)
        XR = 48
        for i in range(4):
            a(f"v_lshlrev_b32 v{XR+2*i}, 16, v{16+i}\nv_and_b32 v{XR+2*i+1}, 0xffff0000, v{16+i}")
        r = [XR + i for i in range(8)]
        a(f"v_add_f32 v32, v{r[0]}, v{r[1]}\nv_add_f32 v33, v{r[2]}, v{r[3]}\nv_add_f32 v32, v32, v{r[4]}\nv_add_f32 v33, v33, v{r[5]}")
        a(f"v_add_f32 v32, v32, v{r[6]}\nv_add_f32 v33, v33, v{r[7]}\nv_add_f32 v32, v32, v33")
        rowsum([32]); xrow([32], [33])
        a(f"v_mul_f32 v32, {f32(1.0/448)}, v32")
        a(f"v_sub_f32 v33, v{r[0]}, v32\nv_mul_f32 v34, v33, v33")
        for i in range(1, 8): a(f"v_sub_f32 v33, v{r[i]}, v32\nv_fmac_f32 v34, v33, v33")
        a("v_mul_f32 v34, v34, v39")
        rowsum([34]); xrow([34], [33])
        a(f"v_mul_f32 v34, {f32(1.0/448)}, v34")
        std_recip(32, 34, 33)
        a(f"v_lshlrev_b32 v{XN}, 16, v20\nv_and_b32 v{XN+1}, 0xffff0000, v20\nv_lshlrev_b32 v{XN+2}, 16, v21\nv_and_b32 v{XN+3}, 0xffff0000, v21")
        for i in range(4): a(f"v_sub_f32 v{XN+i}, v{XN+i}, v32")
        rnd2(XN, XN+1, 38); rnd2(XN+2, XN+3, 38)
        for i in range(4): a(f"v_mul_f32 v{XN+i}, v{XN+i}, v34")
        rnd2(XN, XN+1, 38); rnd2(XN+2, XN+3, 38)
    tags_ready()
    a(f"v_mov_b32 v30, s{S_TAG8}\nv_mov_b32 v31, s{S_TAG16}")
    dry_begin("L_Q")
    with only("ge", 3, 6):
        tmo_init()
        a.label("L_x1poll")
        with vmem():
            a(f"buffer_load_dwordx4 v[{G}:{G+3}], v8, s[4:7], s32 offen sc1")
            a(f"buffer_load_dwordx4 v[{G+4}:{G+7}], v8, s[4:7], s32 offen offset:1792 sc1")
            a(f"buffer_load_dwordx4 v[{G+8}:{G+11}], v8, s[4:7], s35 offen sc1")
            a(f"buffer_load_dwordx4 v[{G+12}:{G+15}], v8, s[4:7], s35 offen offset:1792 sc1")
            a("s_waitcnt vmcnt(0)")
        msad_check([G + i for i in range(16)], 30, 32, 33)
        poll_tail("L_x1poll")
        stamp(6)
        for i in range(0, 8, 2): a(f"v_pk_add_f32 v[{G+i}:{G+i+1}], v[{G+i}:{G+i+1}], v[{G+8+i}:{G+9+i}]")
        rnd2(G, G+1, 32); rnd2(G+2, G+3, 33); rnd2(G+4, G+5, 34); rnd2(G+6, G+7, 35)
        for i in range(4): a(f"v_add_f32 v{G+4+i}, 1.0, v{G+4+i}")
        rnd2(G+4, G+5, 34); rnd2(G+6, G+7, 35)
        for i in range(4): a(f"v_mul_f32 v{G+4+i}, v{G+4+i}, v{XN+i}")
        rnd2(G+4, G+5, 34); rnd2(G+6, G+7, 35)
        for i in range(4): a(f"v_add_f32 v{G+i}, v{G+i}, v{G+4+i}")
        a(f"v_cvt_pk_bf16_f32 v32, v{G}, v{G+1}\nv_cvt_pk_bf16_f32 v33, v{G+2}, v{G+3}")
        a("ds_write_b64 v10, v[32:33]\ns_waitcnt lgkmcnt(0)")
    barrier()
    for i in range(7):
        a(f"ds_read_b128 v[{HF+4*i}:{HF+4*i+3}], v27 offset:{i*64}")
    for i in range(7):
        a(f"s_waitcnt lgkmcnt({6-i})")
        c = "0" if i == 0 else "v[32:35]"
        a(f"{MF} v[32:35], v[{WF+4*i}:{WF+4*i+3}], v[{HF+4*i}:{HF+4*i+3}], {c}")
    nop(8)
    for r in range(4): a(f"v_add_u32 v{32+r}, 0x80, v{32+r}")
    for r in range(4): a(f"v_and_or_b32 v{32+r}, v{32+r}, v29, v30")
    with vmem():
        a("buffer_store_dwordx4 v[32:35], v26, s[4:7], 0 offen sc1")
    stamp(7)
    dry_mid("L_Q")
    a("s_waitcnt vmcnt(0)\ns_barrier")
    stamp(5)
    for i in range(7): tr_frag(WF + 4 * i, 36, 36, Q_W + i * 8192, 256)
    a("s_waitcnt lgkmcnt(0)")
    dry_end("L_Q")
    a.label("L_Q_end")
    a("s_barrier")
    with only("eq", 39, 1):
        a(f"""
        s_lshr_b32 s26, s36, 1
        s_and_b32 s27, s36, 1
        s_mul_i32 s28, s27, {NQT}
        s_add_u32 s28, s28, {NTA}
        s_add_u32 s27, s27, 10
        s_mov_b32 s29, {NQT}
        s_branch L_A_par
        """)
    WOF = 128; W1F = 192; W2F = 96
    srd(12, P_WO, 3670016)
    a(f"s_mul_i32 s35, s24, {WR*896}\ns_add_u32 s35, s35, s33")
    dma_list(12, 3, 35, 33, [(i * 8192, i * 8192) for i in range(14)], 32)
    a("s_mov_b32 s38, 0\ns_mov_b32 s25, s28\nv_mov_b32 v22, v9\nv_mov_b32 v23, v9\nv_bfe_u32 v16, v0, 2, 1\nv_and_b32 v17, 3, v0")
    a("s_branch L_back")

    a.label("L_roleL")
    stamp(1)
    srd(4, P_WS, 0x10000000)
    epoch_load()
    a(f"""
    v_mov_b32 v4, -1
    v_mov_b32 v5, -1
    v_mov_b32 v6, -1
    v_mov_b32 v7, -1
    s_lshl_b32 s36, s24, 12
    s_add_u32 s37, s36, {X5}
    s_add_u32 s36, s36, {X4A}
    s_add_u32 s32, s33, s36
    s_add_u32 s34, s33, s37
    s_sub_u32 s34, s34, 4096
    s_cmp_lt_u32 s3, 4
    s_cselect_b32 s32, s32, s34
    buffer_store_dwordx4 v[4:7], v3, s[4:7], s32 offen sc1
    v_bfe_u32 v16, v0, 2, 1
    v_and_b32 v17, 3, v0
    v_bfe_u32 v18, v0, 3, 1
    v_lshl_add_u32 v19, v18, 1, v16
    v_lshlrev_b32 v22, 5, v19
    v_lshl_add_u32 v22, v17, 3, v22
    s_lshl_b32 s32, s24, 7
    v_add_u32 v22, s32, v22
    v_lshl_add_u32 v19, v16, 1, v18
    v_lshlrev_b32 v23, 5, v19
    v_lshl_add_u32 v23, v17, 3, v23
    v_add_u32 v23, s32, v23
    v_cmp_lt_u32 vcc, 15, v0
    v_add_u32 v22, {X4B}, v22
    v_add_u32 v23, {XST}, v23
    v_cndmask_b32 v22, v22, v9, vcc
    v_cndmask_b32 v23, v23, v9, vcc
    """)
    with only("eq", 3, 7):
        a("buffer_store_dwordx2 v[4:5], v22, s[4:7], 0 offen sc1\nbuffer_store_dwordx2 v[4:5], v23, s[4:7], 0 offen sc1")
    a(f"""
    s_and_b32 s34, s3, 3
    v_and_b32 v27, 1, v1
    v_lshlrev_b32 v27, 10, v27
    v_lshl_add_u32 v27, v2, 4, v27
    v_add_u32 v27, {S_SC}, v27
    s_mul_i32 s35, s28, {2*896*4}
    s_lshl_b32 s32, s29, 8
    s_add_u32 s35, s35, s32
    s_add_u32 s35, s35, {X1}
    s_lshl_b32 s32, s24, 9
    s_add_u32 s32, s32, {X0L}
    s_movk_i32 s31, {896*4}
    s_cmp_ge_u32 s3, 4
    s_cselect_b32 s35, s32, s35
    s_cselect_b32 s31, 256, s31
    s_lshl_b32 s32, s34, 6
    s_add_u32 s35, s35, s32
    v_mul_u32_u24 v28, s31, v1
    v_lshl_add_u32 v28, v2, 4, v28
    v_add_u32 v28, s35, v28
    s_mul_i32 s32, s28, 448
    v_add_u32 v8, s32, v27
    s_lshl_b32 s31, s30, 10
    s_add_u32 s31, s31, {S_SC}
    v_add_u32 v10, s31, v3
    v_mov_b32 v29, 0xffff0000
    v_mov_b32 v21, 0xffffff00
    """)
    mask_n2(28, 9)
    tr_base_sw(36, 38, 34, 32, 0)
    tags_ready()
    a(f"v_mov_b32 v30, s{S_TAG8}\nv_mov_b32 v31, s{S_TAG16}")
    a("s_cmp_ge_u32 s3, 4\ns_cbranch_scc1 L_Mskip")
    dry_begin("L_M1")
    with only("lt", 3, 2):
        with vmem():
            a("s_waitcnt vmcnt(5)")
        for i in range(4):
            a(f"v_lshlrev_b32 v{40+2*i}, 16, v{12+i}\nv_and_b32 v{41+2*i}, 0xffff0000, v{12+i}")
        silu(list(range(40, 48)), list(range(48, 56)))
        for i in range(4): a(f"v_cvt_pk_bf16_f32 v{48+i}, v{40+2*i}, v{41+2*i}")
        a("ds_write_b128 v10, v[48:51]")
    with vmem():
        a("s_waitcnt vmcnt(1) lgkmcnt(0)")
    barrier()
    stamp(5)
    for i in range(7):
        tr_frag(WF + 4 * i, 36, 36, S_R0 + i * 4096, 128)
        a(f"ds_read_b128 v[{HF+4*i}:{HF+4*i+3}], v8 offset:{i*64}")
    for i in range(7):
        a(f"s_waitcnt lgkmcnt({min(15, 3*(6-i))})")
        c = "0" if i == 0 else "v[32:35]"
        a(f"{MF} v[32:35], v[{WF+4*i}:{WF+4*i+3}], v[{HF+4*i}:{HF+4*i+3}], {c}")
    nop(8)
    for r in range(4): a(f"v_and_or_b32 v{32+r}, v{32+r}, v21, v30")
    with vmem():
        a("buffer_store_dwordx4 v[32:35], v28, s[4:7], 0 offen sc1")
    stamp(6)
    dry_mid("L_M1")
    dry_end("L_M1")
    a("s_waitcnt vmcnt(1)\ns_branch L_L2")
    a.label("L_Mskip")
    a("s_waitcnt vmcnt(0)\ns_barrier")
    a.label("L_L2")
    a(f"""
    s_getreg_b32 s31, hwreg(HW_REG_XCC_ID, 0, 4)
    s_lshl_b32 s31, s31, 16
    s_or_b32 s31, s31, s{S_TAG16}
    v_mov_b32 v56, s31
    v_mov_b32 v57, s31
    v_mov_b32 v58, s31
    v_mov_b32 v59, s31
    s_lshl_b32 s31, s24, 4
    s_add_u32 s31, s31, {XID}
    v_mov_b32 v8, s31
    v_cmp_ne_u32 vcc, 0, v0
    s_nop 1
    v_cndmask_b32 v8, v8, v9, vcc
    s_barrier
    """)
    with only("eq", 3, 7):
        a("buffer_store_dwordx4 v[56:59], v8, s[4:7], 0 offen sc1")
    srd(16, P_W1, 1605632)
    srd(20, P_W2, 1605632)
    a(f"s_lshl_b32 s35, s24, 7\ns_add_u32 s35, s35, 1792\ns_mul_i32 s32, s3, {8*5376}\ns_add_u32 s35, s35, s32")
    dma_list(8, 25, 35, 33, [(i * 64 * 5376, S_R1 + i * 8192) for i in range(7)], 32)
    a(f"s_movk_i32 s32, 3584\nv_mul_lo_u32 v24, v24, s32\nv_add_u32 v24, v24, v26")
    a(f"s_lshl_b32 s35, s24, 7\ns_mul_i32 s32, s3, {8*3584}\ns_add_u32 s35, s35, s32")
    dma_list(16, 24, 35, 33, [(i * 64 * 3584, S_R0 + i * 8192) for i in range(7)], 32)
    a("s_waitcnt vmcnt(7)\ns_barrier")
    with only("ge", 3, 4):
        a(f"v_add_u32 v36, {S_R1}, v36")
        for i in range(14):
            tr_frag(WF + 4 * i, 36, 36, i * 4096, 128)
            a(f"ds_read_b128 v[{HF+4*i}:{HF+4*i+3}], v27 offset:{i*64}")
        a("s_waitcnt lgkmcnt(0)")
        for i in range(14):
            c = "0" if i == 0 else "v[32:35]"
            a(f"{MF} v[32:35], v[{WF+4*i}:{WF+4*i+3}], v[{HF+4*i}:{HF+4*i+3}], {c}")
        nop(8)
        a("v_cvt_pk_bf16_f32 v37, v32, v33\nv_cvt_pk_bf16_f32 v38, v34, v35")
        a("v_lshl_or_b32 v32, v37, 16, v31\nv_and_or_b32 v33, v37, v29, v31\nv_lshl_or_b32 v34, v38, 16, v31\nv_and_or_b32 v35, v38, v29, v31")
        a("buffer_store_dwordx4 v[32:35], v28, s[4:7], 0 offen sc1")
        stamp(6)
    a("s_barrier")
    a(f"s_mul_i32 s35, s24, {64*896}\ns_add_u32 s35, s35, s33")
    dma_list(20, 3, 35, 33, [(i * 8192, S_R1 + i * 8192) for i in range(7)], 32)
    a("s_mov_b32 s38, 1\ns_mov_b32 s25, 0\ns_mov_b32 s29, 0")

    a.label("L_back")
    stamp(2)
    srd(8, P_OUT, 1792)
    srd(12, P_X, 1792)
    NI = NJ // 2
    a(f"""
    s_sub_u32 s30, s3, 5
    s_and_b32 s30, s30, 1
    s_mul_i32 s32, s30, {NJ*WR*4}
    s_add_u32 s25, s25, s32
    s_add_u32 s39, s25, 4096
    s_lshl_b32 s32, s30, 7
    s_add_u32 s29, s29, s32
    v_lshlrev_b32 v8, 3, v1
    v_lshrrev_b32 v10, 5, v0
    v_lshlrev_b32 v10, 2, v10
    v_and_b32 v11, 31, v0
    v_lshlrev_b32 v11, 3, v11
    s_lshl_b32 s34, s30, 8
    v_add_u32 v11, s34, v11
    v_add_u32 v11, {S_O}, v11
    v_and_b32 v27, 1, v1
    v_lshlrev_b32 v25, 8, v27
    v_lshl_add_u32 v25, v2, 4, v25
    v_add_u32 v25, {S_O}, v25
    v_lshlrev_b32 v26, 7, v27
    v_lshl_add_u32 v24, v2, 3, v26
    v_lshl_add_u32 v26, v2, 4, v26
    v_add_u32 v26, {S_H1}, v26
    s_and_b32 s34, s3, 3
    s_lshl_b32 s32, s34, 5
    v_add_u32 v24, s32, v24
    v_add_u32 v24, {S_H1}, v24
    s_lshl_b32 s32, s3, 12
    s_lshl_b32 s35, s24, 7
    s_add_u32 s32, s32, s35
    v_lshlrev_b32 v28, 6, v1
    v_lshl_add_u32 v28, v2, 4, v28
    v_add_u32 v28, s32, v28
    v_add_u32 v29, {X5}, v28
    v_add_u32 v28, {X4A}, v28
    v_cmp_lt_u32 vcc, 1, v1
    s_mov_b32 s26, {8*4096}
    s_mov_b32 s27, {16*4096}
    v_cndmask_b32 v28, v28, v9, vcc
    v_cndmask_b32 v29, v29, v9, vcc
    v_mov_b32 v13, {EPOCH}
    v_cmp_le_u32 vcc, 32, v0
    v_mul_u32_u24 v15, 896, v16
    v_lshl_add_u32 v15, v17, 3, v15
    v_cndmask_b32 v12, v3, v9, vcc
    v_cmp_ne_u32 vcc, 0, v0
    s_lshl_b32 s32, s24, 5
    v_add_u32 v15, s32, v15
    v_cndmask_b32 v13, v13, v9, vcc
    v_cmp_lt_u32 vcc, 7, v0
    s_mov_b32 s28, {24*4096}
    v_lshrrev_b32 v18, 1, v2
    v_cndmask_b32 v14, v15, v9, vcc
    v_lshlrev_b32 v18, 7, v18
    v_and_b32 v19, 3, v1
    v_lshl_add_u32 v18, v19, 5, v18
    v_and_b32 v19, 1, v2
    v_lshl_add_u32 v18, v19, 4, v18
    v_add_u32 v18, {X4B}, v18
    v_lshlrev_b32 v19, 6, v0
    v_add_u32 v19, {XST}, v19
    v_cmp_le_u32 vcc, 56, v0
    v_and_b32 v27, 3, v1
    v_lshlrev_b32 v27, 10, v27
    v_cndmask_b32 v19, v19, v9, vcc
    v_cndmask_b32 v39, 1.0, 0, vcc
    v_lshl_add_u32 v27, v2, 4, v27
    v_add_u32 v27, {S_G}, v27
    s_mov_b32 s{S_LOC}, 0
    s_mov_b32 s62, {f32(1.0/16)}
    v_cmp_le_u32 s[60:61], 8, v1
    """)
    GA = 80; GB = 84; GO = 88; XI = 92; XO = 4; UU = 248; VV = 252; TQ = [20, 21, 38, 37]; WT = 72; YF = 128
    def loc2(fn):
        if cfg.LOCAL:
            l1 = a.newlabel("L_loc"); l2 = a.newlabel("L_loc")
            a(f"s_cmp_eq_u32 s{S_LOC}, 0\ns_cbranch_scc1 {l1}")
            fn(""); a(f"s_branch {l2}")
            a.label(l1); fn("sc1"); a.label(l2)
        else:
            nop(2); fn("sc1")
    def gemv_rows(KSn, wfbase, vfr, accbase, vst, local=True):
        for k in range(KSn):
            a(f"ds_read_b128 v[{HF+4*k}:{HF+4*k+3}], v{vfr} offset:{k*64}")
        for k in range(KSn):
            a(f"s_waitcnt lgkmcnt({KSn-1-k})")
            for ti in range(3):
                acc = accbase + 4 * ti
                c = "0" if k == 0 else f"v[{acc}:{acc+3}]"
                wf = wfbase + (ti * KSn + k) * 4
                a(f"{MF} v[{acc}:{acc+3}], v[{wf}:{wf+3}], v[{HF+4*k}:{HF+4*k+3}], {c}")
        with only("lt", 3, 4):
            acc = accbase + 12
            for k in range(KSn):
                c = "0" if k == 0 else f"v[{acc}:{acc+3}]"
                wf = wfbase + (3 * KSn + k) * 4
                a(f"{MF} v[{acc}:{acc+3}], v[{wf}:{wf+3}], v[{HF+4*k}:{HF+4*k+3}], {c}")
        nop(5)
        def stores(pol):
            for ti in range(3):
                so = "0" if ti == 0 else f"s{25+ti}"
                a(f"buffer_store_dwordx4 v[{accbase+4*ti}:{accbase+3+4*ti}], v{vst}, s[4:7], {so} offen {pol}")
            with only("lt", 3, 4):
                a(f"s_nop 1\nbuffer_store_dwordx4 v[{accbase+12}:{accbase+15}], v{vst}, s[4:7], s28 offen {pol}")
        with vmem():
            if local: loc2(stores)
            else:
                nop(2); stores("sc1")
    def gather_reduce(loopname, sbase, lastv):
        tmo_init()
        a.label(loopname)
        with vmem():
            for i in range(4):
                a(f"buffer_load_dwordx4 v[{HF+4*i}:{HF+4*i+3}], v{lastv if i == 3 else 3}, s[4:7], s{sbase} offen offset:{i*1024} sc1")
            a("s_waitcnt vmcnt(0)")
        for h in range(2):
            a(f"v_pk_add_f32 v[{32+2*h}:{33+2*h}], v[{HF+2*h}:{HF+1+2*h}], v[{HF+4+2*h}:{HF+5+2*h}]")
            a(f"v_pk_add_f32 v[{HF+2*h}:{HF+1+2*h}], v[{HF+8+2*h}:{HF+9+2*h}], v[{HF+12+2*h}:{HF+13+2*h}]")
        for h in range(2):
            a(f"v_pk_add_f32 v[{32+2*h}:{33+2*h}], v[{32+2*h}:{33+2*h}], v[{HF+2*h}:{HF+1+2*h}]")
        a("v_cmp_u_f32 vcc, v32, v34")
        poll_tail(loopname)
        rowsum([32, 33, 34, 35], steps=(8,))
        xrow([32, 33, 34, 35], TQ)
    dry_begin("L_T")
    a("s_cmp_eq_u32 s38, 1\ns_cbranch_scc1 L_T_fl")
    a("s_sub_u32 s32, s3, 5")
    with only("lt", 32, 2):
        tmo_init()
        a.label("L_mlpoll")
        with vmem():
            a("buffer_load_dwordx2 v[32:33], v8, s[4:7], s29 offen sc1\ns_waitcnt vmcnt(0)")
        a(f"v_cmp_gt_u32 s[34:35], {NJ}, v1\nv_cmp_u_f32 vcc, v32, v33\ns_and_b64 vcc, vcc, s[34:35]")
        a("s_sleep 2")
        poll_tail("L_mlpoll")
        a("v_mov_b32 v34, 0xff800000\nv_cndmask_b32 v32, v34, v32, s[34:35]\nv_cndmask_b32 v33, 0, v33, s[34:35]\nv_mov_b32 v34, v32")
        rowsum([34], "v_max_f32")
        a("v_sub_f32 v32, v32, v34\nv_exp_f32 v32, v32\ns_nop 0\nv_mul_f32 v33, v33, v32")
        rowsum([33])
        a("v_rcp_f32 v33, v33\ns_nop 0\nv_mul_f32 v32, v32, v33")
        for i in range(NI):
            a(f"v_add_u32 v34, {i*8}, v10\nds_bpermute_b32 v{WT+i}, v34, v32")
        a("s_waitcnt lgkmcnt(0)")
        stamp(3)
        tmo_init()
        a.label("L_x3poll")
        with vmem():
            for i in range(NI):
                if i < 4: a(f"buffer_load_dwordx4 v[{G+4*i}:{G+4*i+3}], v3, s[4:7], s25 offen offset:{i*1024} sc1")
                else: a(f"buffer_load_dwordx4 v[{G+4*i}:{G+4*i+3}], v3, s[4:7], s39 offen offset:{i*1024-4096} sc1")
            a("s_waitcnt vmcnt(0)")
        for r in range(4):
            for i in range(NI):
                if i == 0: a(f"v_mul_f32 v{32+r}, v{G+r}, v{WT}")
                else: a(f"v_fmac_f32 v{32+r}, v{G+4*i+r}, v{WT+i}")
            if r == 0:
                a("v_cmp_u_f32 vcc, v32, v32")
                poll_tail("L_x3poll")
        xrow([32, 33, 34, 35], TQ, which=(32,))
        a("v_cvt_pk_bf16_f32 v20, v32, v33\nv_cvt_pk_bf16_f32 v21, v34, v35")
        a("ds_write_b64 v11, v[20:21]\ns_waitcnt lgkmcnt(0)")
        stamp(4)
    barrier()
    gemv_rows(4, WOF, 25, G, 28, False)
    stamp(9)
    a("s_branch L_T_skip")
    a.label("L_T_fl")
    with only("eq", 3, 4):
        gather_reduce("L_x4apoll", 36, 3)
        stamp(4)
        rnd2(32, 33, 36); rnd2(34, 35, 37)
        for r in range(4): a(f"v_mul_f32 v{32+r}, v{32+r}, v{GA+r}")
        rnd2(32, 33, 36); rnd2(34, 35, 37)
        for r in range(4): a(f"v_add_f32 v{XO+r}, v{32+r}, v{XI+r}")
        rnd2(XO, XO+1, 36); rnd2(XO+2, XO+3, 37)
        for r in range(4): a(f"v_mul_f32 v{32+r}, v{XO+r}, v{GO+r}")
        a(f"v_add_f32 v{G+8}, v{XO}, v{XO+1}\nv_add_f32 v{G+9}, v{XO+2}, v{XO+3}")
        a("v_cvt_pk_bf16_f32 v36, v32, v33\nv_cvt_pk_bf16_f32 v37, v34, v35")
        a(f"v_add_f32 v{G+8}, v{G+8}, v{G+9}")
        a(f"v_lshlrev_b32 v{G}, 16, v36\nv_and_b32 v{G+1}, 0xffff0000, v36\nv_lshlrev_b32 v{G+2}, 16, v37\nv_and_b32 v{G+3}, 0xffff0000, v37")
        a(f"v_add_f32_dpp v{G+8}, v{G+8}, v{G+8} quad_perm:[1,0,3,2] row_mask:0xf bank_mask:0xf")
        for r in range(4): a(f"v_sub_f32 v{32+r}, v{32+r}, v{G+r}")
        a(f"v_add_f32_dpp v{G+8}, v{G+8}, v{G+8} quad_perm:[2,3,0,1] row_mask:0xf bank_mask:0xf")
        a(f"v_cvt_pk_bf16_f32 v{G}, v32, v33\nv_cvt_pk_bf16_f32 v{G+1}, v34, v35")
        a(f"v_cndmask_b32 v36, v36, v{G}, s[60:61]\nv_cndmask_b32 v37, v37, v{G+1}, s[60:61]")
        with vmem():
            loc2(lambda pol: a(f"buffer_store_dwordx2 v[36:37], v22, s[4:7], 0 offen {pol}"))
        a(f"v_mul_f32 v{G+10}, {f32(1.0/16)}, v{G+8}")
        for r in range(4): a(f"v_sub_f32 v{32+r}, v{XO+r}, v{G+10}")
        a(f"v_mul_f32 v{G+9}, v32, v32\nv_fmac_f32 v{G+9}, v33, v33\nv_fmac_f32 v{G+9}, v34, v34\nv_fmac_f32 v{G+9}, v35, v35")
        nop(2)
        a(f"v_add_f32_dpp v{G+9}, v{G+9}, v{G+9} quad_perm:[1,0,3,2] row_mask:0xf bank_mask:0xf")
        nop(2)
        a(f"v_add_f32_dpp v{G+9}, v{G+9}, v{G+9} quad_perm:[2,3,0,1] row_mask:0xf bank_mask:0xf")
        with vmem():
            loc2(lambda pol: a(f"buffer_store_dwordx2 v[{G+8}:{G+9}], v23, s[4:7], 0 offen {pol}"))
    if cfg.FINE: stamp(1)
    barrier()
    if cfg.FINE: stamp(5)
    with only("lt", 3, 4):
        tmo_init()
        a.label("L_ypoll")
        with vmem():
            for i in range(14):
                a(f"buffer_load_dwordx4 v[{YF+4*i}:{YF+4*i+3}], v18, s[4:7], 0 offen offset:{i*256} sc1")
            a(f"buffer_load_dwordx2 v[{G}:{G+1}], v19, s[4:7], 0 offen sc1")
            a("s_waitcnt vmcnt(0)")
        a(f"v_cmp_u_f32 vcc, v{G}, v{G+1}")
        poll_tail("L_ypoll")
        if cfg.FINE:
            with only("eq", S_TMO, cfg.TMO): stamp(6)
            stamp(7)
        st = []
        st.append(f"v_mov_b32 v{G+2}, v{G}"); st.append("N")
        for s_ in (2, 4, 8):
            st.append(f"v_add_f32_dpp v{G+2}, v{G+2}, v{G+2} row_ror:{s_} row_mask:0xf bank_mask:0xf"); st.append("N")
        for w in (16, 32):
            st.append(f"v_mov_b32 v{G+3}, v{G+2}"); st.append("N")
            st.append(f"v_permlane{w}_swap_b32 v{G+2}, v{G+3}"); st.append("N")
            st.append(f"v_add_f32 v{G+2}, v{G+2}, v{G+3}")
        st.append(f"v_mul_f32 v{G+2}, {f32(1.0/448)}, v{G+2}")
        st.append(f"v_fma_f32 v{G+3}, v{G}, s62, -v{G+2}")
        st.append(f"v_mul_f32 v{G+3}, v{G+3}, v{G+3}")
        st.append(f"v_fmac_f32 v{G+1}, 0x41800000, v{G+3}")
        st.append(f"v_mul_f32 v{G+1}, v{G+1}, v39"); st.append("N")
        for s_ in (2, 4, 8):
            st.append(f"v_add_f32_dpp v{G+1}, v{G+1}, v{G+1} row_ror:{s_} row_mask:0xf bank_mask:0xf"); st.append("N")
        for w in (16, 32):
            st.append(f"v_mov_b32 v{G+3}, v{G+1}"); st.append("N")
            st.append(f"v_permlane{w}_swap_b32 v{G+1}, v{G+3}"); st.append("N")
            st.append(f"v_add_f32 v{G+1}, v{G+1}, v{G+3}")
        st.append(f"v_mul_f32 v{G+1}, {f32(1.0/448)}, v{G+1}")
        mi = 0
        def mfma_next():
            nonlocal mi
            c = "0" if mi == 0 else "v[32:35]"
            a(f"{MF} v[32:35], v[{W1F+4*mi}:{W1F+4*mi+3}], v[{YF+4*mi}:{YF+4*mi+3}], {c}")
            mi += 1
        mfma_next()
        for s_ in st:
            if s_ == "N":
                if mi < 14: mfma_next(); a("s_nop 0")
                else: a("s_nop 1")
            else: a(s_)
        while mi < 14: mfma_next()
        std_recip(G + 2, G + 1, G + 3)
        for r in range(4):
            a(f"v_add_f32_dpp v{32+r}, v{32+r}, v{32+r} quad_perm:[2,3,0,1] row_mask:0xf bank_mask:0xf")
        for r in range(4): a(f"v_fma_f32 v{32+r}, -v{G+2}, v{UU+r}, v{32+r}")
        for r in range(4): a(f"v_fma_f32 v{32+r}, v{32+r}, v{G+1}, v{VV+r}")
        a("v_add_f32 v36, v32, v33\nv_add_f32 v37, v34, v35\nv_cmp_u_f32 vcc, v36, v37")
        poll_tail("L_ypoll")
        stamp(3)
        rnd2(32, 33, 36); rnd2(34, 35, 37)
        silu([32, 33, 34, 35], TQ)
        a("v_cvt_pk_bf16_f32 v36, v32, v33\nv_cvt_pk_bf16_f32 v37, v34, v35")
        a("ds_write_b64 v24, v[36:37]\ns_waitcnt lgkmcnt(0)")
    barrier()
    stamp(8)
    gemv_rows(2, W2F, 26, G, 29)
    if cfg.FINE: stamp(2)
    with only("eq", 3, 4):
        gather_reduce("L_x5poll", 37, 12)
        if cfg.FINE:
            stamp(7)
            a(f"s_sub_u32 s32, {cfg.TMO}, s{S_TMO}\ns_waitcnt lgkmcnt(0)\ns_add_u32 s{SR(6)}, s40, s32\ns_mov_b32 s{SR(6)+1}, s41")
        rnd2(32, 33, 36); rnd2(34, 35, 37)
        for r in range(4): a(f"v_mul_f32 v{32+r}, v{32+r}, v{GB+r}")
        rnd2(32, 33, 36); rnd2(34, 35, 37)
        for r in range(4): a(f"v_add_f32 v{32+r}, v{32+r}, v{XO+r}")
        a("v_cvt_pk_bf16_f32 v36, v32, v33\nv_cvt_pk_bf16_f32 v37, v34, v35")
        with vmem():
            a("buffer_store_dwordx2 v[36:37], v14, s[8:11], 0 offen")
            with only("eq", 24, 0):
                a(f"v_mov_b32 v38, s{S_EP}\nbuffer_store_dword v38, v13, s[4:7], 0 offen")
        stamp(9)
    a.label("L_T_skip")
    dry_mid("L_T")
    id_poll("L_idpoll", 28)
    with only("eq", 38, 0):
        a("s_barrier")
        stamp(10)
        tr_base(36, 896, 37)
        a("s_lshl_b32 s34, s3, 5\nv_add_u32 v36, s34, v36\nv_add_u32 v37, 0x10000, v36")
        for ti in range(3):
            for k in range(4): tr_frag(WOF + (ti * 4 + k) * 4, 36, 37, k * 32 * 896 + ti * 8 * 32, 896)
        with only("lt", 3, 4):
            for k in range(4): tr_frag(WOF + (12 + k) * 4, 36, 37, k * 32 * 896 + 3 * 8 * 32, 896)
        a("s_waitcnt lgkmcnt(0)")
    if cfg.LOCAL:
        a(f"""v_readfirstlane_b32 s32, v{G}
        s_nop 1
        v_cmp_ne_u32 vcc, s32, v{G}
        s_cmp_eq_u64 vcc, 0
        s_cselect_b32 s{S_LOC}, 1, 0""")
    with only("eq", 38, 1):
        with only("ge", 3, 4):
            a(f"""
            s_lshr_b32 s31, s3, 1
            s_and_b32 s31, s31, 1
            s_and_b32 s32, s3, 1
            s_lshl_b32 s32, s32, 8
            v_lshlrev_b32 v21, 2, v0
            v_add_u32 v21, s32, v21
            v_min_u32 v21, 444, v21
            v_lshlrev_b32 v20, 1, v21
            v_lshrrev_b32 v38, 6, v21
            v_and_b32 v21, 63, v21
            v_lshlrev_b32 v21, 2, v21
            v_lshl_add_u32 v21, v38, 9, v21
            s_lshl_b32 s32, s31, 8
            s_add_u32 s32, s32, {X0L + 7*512}
            s_lshl_b32 s31, s31, 10
            s_add_u32 s31, s31, {S_G}
            v_add_u32 v20, s31, v20
            s_lshr_b32 s34, s24, 2
            s_lshl_b32 s34, s34, 9
            s_and_b32 s35, s24, 3
            s_lshl_b32 s35, s35, 6
            s_add_u32 s34, s34, s35
            s_add_u32 s34, s34, {X0L}
            v_lshlrev_b32 v38, 8, v16
            v_lshl_add_u32 v38, v17, 4, v38
            v_add_u32 v38, s34, v38
            s_mov_b32 s34, {14*512}
            s_mov_b32 s35, {21*512}
            buffer_load_dwordx2 v[{XI+2}:{XI+3}], v15, s[12:15], 0 offen
            """)
            tmo_init()
            a.label("L_x0poll")
            a(f"buffer_load_dwordx4 v[{G}:{G+3}], v21, s[4:7], s32 offen sc1")
            a(f"buffer_load_dwordx4 v[{G+4}:{G+7}], v21, s[4:7], s32 offen offset:{7*512} sc1")
            a(f"buffer_load_dwordx4 v[{GA}:{GA+3}], v38, s[4:7], 0 offen sc1")
            a(f"buffer_load_dwordx4 v[{GO}:{GO+3}], v38, s[4:7], s34 offen sc1")
            a(f"buffer_load_dwordx4 v[{GB}:{GB+3}], v38, s[4:7], s35 offen sc1")
            a("s_waitcnt vmcnt(0)")
            regs_ = [G + i for i in range(8)] + [GA + i for i in range(12)]
            msad_check(regs_, 31, 32, 33)
            a("s_sleep 4")
            poll_tail("L_x0poll")
            for r_ in regs_: a(f"v_and_b32 v{r_}, 0xffff0000, v{r_}")
            for i in range(4): a(f"v_add_f32 v{G+4+i}, 1.0, v{G+4+i}\nv_add_f32 v{GO+i}, 1.0, v{GO+i}")
            a(f"v_cvt_pk_bf16_f32 v32, v{G+4}, v{G+5}\nv_cvt_pk_bf16_f32 v33, v{G+6}, v{G+7}")
            a(f"v_cvt_pk_bf16_f32 v34, v{G}, v{G+1}\nv_cvt_pk_bf16_f32 v35, v{G+2}, v{G+3}")
            a("ds_write_b64 v20, v[32:33]\nds_write_b64 v20, v[34:35] offset:2048")
            rnd2(GO, GO+1, 36); rnd2(GO+2, GO+3, 36)
            a(f"v_lshlrev_b32 v{XI}, 16, v{XI+2}\nv_and_b32 v{XI+1}, 0xffff0000, v{XI+2}\nv_lshlrev_b32 v{XI+2}, 16, v{XI+3}\nv_and_b32 v{XI+3}, 0xffff0000, v{XI+3}")
        a("s_waitcnt vmcnt(0) lgkmcnt(0)\ns_barrier")
        stamp(10)
        tr_base(36, 896, 37)
        a(f"s_lshl_b32 s32, s3, 5\ns_add_u32 s32, s32, {S_R1}\nv_add_u32 v36, s32, v36")
        for ti in range(3):
            for k in range(2): tr_frag(W2F + (ti * 2 + k) * 4, 36, 36, k * 32 * 896 + ti * 8 * 32, 896)
        with only("lt", 3, 4):
            for k in range(2): tr_frag(W2F + (3 * 2 + k) * 4, 36, 36, k * 32 * 896 + 3 * 8 * 32, 896)
            a("s_waitcnt lgkmcnt(0)\ns_and_b32 s34, s3, 3")
            tr_base_sw(36, 38, 34, 32, S_R0)
            for i in range(14): tr_frag(W1F + 4 * i, 36, 36, i * 4096, 128)
            for hf in range(2):
                for i in range(7): a(f"ds_read_b128 v[{G+4*i}:{G+4*i+3}], v27 offset:{(hf*7+i)*64}")
                a("s_waitcnt lgkmcnt(0)")
                for i in range(7):
                    c = "0" if (hf == 0 and i == 0) else "v[32:35]"
                    a(f"{MF} v[32:35], v[{W1F+4*(hf*7+i)}:{W1F+4*(hf*7+i)+3}], v[{G+4*i}:{G+4*i+3}], {c}")
                nop(10)
            for r in range(4):
                a(f"v_mov_b32_dpp v{UU+r}, v{32+r} quad_perm:[0,1,0,1] row_mask:0xf bank_mask:0xf")
                a(f"v_mov_b32_dpp v{VV+r}, v{32+r} quad_perm:[2,3,2,3] row_mask:0xf bank_mask:0xf")
        a("s_waitcnt lgkmcnt(0)")
    stamp(11)
    dry_end("L_T")
    end_wave()

    if cfg.STAMPS:
        a.label("L_stamps")
        a(f"""
        s_mov_b64 exec, -1
        s_lshl_b32 s28, s2, 3
        s_add_u32 s28, s28, s3
        s_lshl_b32 s28, s28, 7
        s_add_u32 s28, s28, {STAMP_OFF}
        s_waitcnt lgkmcnt(0)
        v_mov_b32 v5, {OOB}
        v_cmp_eq_u32 vcc, 0, v0
        s_nop 1
        v_cndmask_b32 v5, v5, 0, vcc
        """)
        for k in range(0, 12, 2):
            a(f"v_mov_b32 v8, s{SR(k)}\nv_mov_b32 v9, s{SR(k)+1}\nv_mov_b32 v10, s{SR(k)+2}\nv_mov_b32 v11, s{SR(k)+3}")
            a(f"buffer_store_dwordx4 v[8:11], v5, s[4:7], s28 offen offset:{k*8}\ns_nop 1")
    a.label("L_exit")
    a("s_endpgm")
    return a

def build(path, **kw):
    cfg = Cfg()
    for k, v in kw.items(): setattr(cfg, k, v)
    a = gen(cfg)
    open(path, "w").write(wrap(a.text(), grid=256, block=512, lds=163840, vgpr=256, sgpr=102))

if __name__ == "__main__":
    build("k9.s")
    build("k9_st.s", STAMPS=True, TMO=20000)
    build("k9_nokv.s", STAMPS=True, TMO=20000, NOKV=True)
```

```python
import sys, struct
from asmlib import *

class Cfg:
    POL = "nt"
    STAMPS = False
    DRY = True
    TMO = 200000
    LOCAL = True
    DK = 8
    DK1 = 2
    NK1 = 4
    NOKV = False
    ORDER = 'LQA'
    LCLS = 0
    CLS = False
    CPF = False
    PADTO = 0
    QSLEEP = 5
    SPROBE = False
    SWAP = False
    FINE = False
    MTHR = True
    NP = 2
    NQT = 6
    DV = 16

LOG2E = 1.4426950408889634
def f32(x): return "0x%08x" % struct.unpack("<I", struct.pack("<f", x))[0]

EPOCH = 0
X1 = 0x1000
X0L = 0x10000
XMU = 0x100000
XID = 0x5000
X2 = 0x100000
ML = 0x18000
X4B = 0x1c000
XST = 0x1e000
X4A = 0x20000
X5 = 0x60000
X3 = 0x80000
STAMP_OFF = 0x8000000
OOB = 0x40000000

P_X, P_K, P_V, P_WQ, P_WO, P_BX, P_W1, P_W2 = 64, 66, 68, 70, 72, 74, 76, 78
P_C, P_WM, P_OUT, P_DBG, P_WS = 80, 82, 84, 86, 88
S_TAG16, S_TAG8, S_EP, S_TMO, S_LOC = 90, 91, 92, 93, 94

NJ = 10; KSLOT = 4; WR = 64

def SR(k): return 40 + 2 * k if k < 8 else (100 if k == 8 else (58 if k == 9 else 96 + 2 * (k - 10)))

def gen(cfg):
    POL = cfg.POL
    a = Asm()
    MF = "v_mfma_f32_16x16x32_bf16"

    def srd(d, p, nbytes):
        a(f"s_mov_b32 s{d}, s{p}\ns_and_b32 s{d+1}, s{p+1}, 0xffff\ns_mov_b32 s{d+2}, {nbytes}\ns_mov_b32 s{d+3}, 0x20000")
    def stamp(k):
        if cfg.STAMPS: a(f"s_memrealtime s[{SR(k)}:{SR(k)+1}]")
    def nop(n):
        if n > 0: a(f"s_nop {n-1}")
    def barrier():
        if cfg.DRY:
            l = a.newlabel("L_nb"); a(f"s_cbranch_execz {l}\ns_barrier"); a.label(l)
        else:
            a("s_barrier")
    class vmem:
        def __enter__(s):
            if cfg.DRY:
                s.l = a.newlabel("L_nm"); a(f"s_cbranch_execz {s.l}")
        def __exit__(s, *e):
            if cfg.DRY: a.label(s.l)
    class only:
        def __init__(s, op, sreg, val): s.c = (op, sreg, val)
        def __enter__(s):
            s.l = a.newlabel("L_if"); op, r, v = s.c
            a(f"s_cmp_{op}_u32 s{r}, {v}\ns_cbranch_scc0 {s.l}")
        def __exit__(s, *e): a.label(s.l)
    def rnd2(x, y, t):
        a(f"v_cvt_pk_bf16_f32 v{t}, v{x}, v{y}\nv_lshlrev_b32 v{x}, 16, v{t}\nv_and_b32 v{y}, 0xffff0000, v{t}")
    def rnd1(x):
        a(f"v_cvt_pk_bf16_f32 v{x}, v{x}, v{x}\nv_and_b32 v{x}, 0xffff0000, v{x}")
    def epoch_load():
        a(f"s_load_dword s{S_EP}, s[{P_WS}:{P_WS+1}], {EPOCH}")
    def tags_ready():
        a(f"""s_waitcnt lgkmcnt(0)
        s_add_u32 s{S_EP}, s{S_EP}, 1
        s_and_b32 s{S_TAG8}, s{S_EP}, 0x7f
        s_or_b32 s{S_TAG8}, s{S_TAG8}, 0x80
        s_lshl_b32 s{S_TAG16}, s{S_EP}, 1
        s_and_b32 s{S_TAG16}, s{S_TAG16}, 0x7f00
        s_or_b32 s{S_TAG16}, s{S_TAG16}, 0x8000
        s_or_b32 s{S_TAG16}, s{S_TAG16}, s{S_TAG8}""")
    def poll_tail(loop):
        done = a.newlabel("L_pd")
        a(f"s_cbranch_vccz {done}\ns_sub_u32 s{S_TMO}, s{S_TMO}, 1\ns_cmp_gt_i32 s{S_TMO}, 0\ns_cbranch_scc1 {loop}")
        a.label(done)
    def tmo_init(mult=1):
        a(f"s_mov_b32 s{S_TMO}, {cfg.TMO * mult}")
    def msad_check(regs, tagreg, t0, t1):
        first = regs[0::2]; second = regs[1::2]
        for i, r in enumerate(first):
            a(f"v_msad_u8 v{t0}, v{r}, v{tagreg}, {'0' if i == 0 else 'v%d' % t0}")
            if i < len(second):
                a(f"v_msad_u8 v{t1}, v{second[i]}, v{tagreg}, {'0' if i == 0 else 'v%d' % t1}")
        if second: a(f"v_or_b32 v{t0}, v{t0}, v{t1}")
        a(f"v_cmp_ne_u32 vcc, 0, v{t0}")
    def rowsum(regs, op="v_add_f32", steps=(8, 4, 2, 1)):
        for s in steps:
            if len(regs) < 3: nop(3 - len(regs))
            for r in regs:
                a(f"{op}_dpp v{r}, v{r}, v{r} row_ror:{s} row_mask:0xf bank_mask:0xf")
    def xrow(regs, tmps, op="v_add_f32", which=(16, 32)):
        for w in which:
            for r, t in zip(regs, tmps): a(f"v_mov_b32 v{t}, v{r}")
            nop(max(1, 3 - len(regs)) if len(regs) < 3 else 1)
            for r, t in zip(regs, tmps): a(f"v_permlane{w}_swap_b32 v{r}, v{t}")
            nop(1)
            for r, t in zip(regs, tmps): a(f"{op} v{r}, v{r}, v{t}")
    def end_wave():
        a("s_branch L_stamps" if cfg.STAMPS else "s_endpgm")
    def dry_begin(name):
        a("s_mov_b64 exec, 0" if cfg.DRY else f"s_branch {name}_mid")
        a.label(name + "_top")
    def dry_mid(name):
        a(f"s_cbranch_execnz {name}_done" if cfg.DRY else f"s_branch {name}_done")
        a.label(name + "_mid")
        a("s_mov_b64 exec, -1")
    def dry_end(name):
        a(f"s_branch {name}_top")
        a.label(name + "_done")
    def lds_wait(vaddr, off, target, vt):
        l = a.newlabel("L_lw")
        tmo_init(8)
        a.label(l)
        a(f"ds_read_b32 v{vt}, v{vaddr} offset:{off}\ns_waitcnt lgkmcnt(0)\nv_cmp_gt_u32 vcc, {target}, v{vt}")
        poll_tail(l)
    def lds_signal(vaddr_lane0, off, vone):
        a(f"s_waitcnt lgkmcnt(0)\nds_add_u32 v{vaddr_lane0}, v{vone} offset:{off}")
    def silu(regs, tmps):
        for r, t in zip(regs, tmps): a(f"v_mul_f32 v{t}, {f32(-LOG2E)}, v{r}")
        for r, t in zip(regs, tmps): a(f"v_exp_f32 v{t}, v{t}")
        for r, t in zip(regs, tmps): a(f"v_add_f32 v{t}, 1.0, v{t}")
        for r, t in zip(regs, tmps): a(f"v_rcp_f32 v{t}, v{t}")
        for r, t in zip(regs, tmps): a(f"v_mul_f32 v{r}, v{r}, v{t}")
    def strip_voff(vd, vt, row_stride, stmp, par_sgpr):
        a(f"v_lshrrev_b32 v{vd}, 3, v0")
        a(f"v_and_b32 v{vt}, 2, v{vd}")
        a(f"v_xor_b32 v{vt}, v{vt}, v0\nv_and_b32 v{vt}, 7, v{vt}")
        a(f"s_mov_b32 s{stmp}, {row_stride}\nv_mul_lo_u32 v{vd}, v{vd}, s{stmp}")
        a(f"v_lshl_add_u32 v{vd}, v{vt}, 4, v{vd}")
        if par_sgpr is None:
            a(f"v_xor_b32 v{vd+1}, 64, v{vd}")
        else:
            a(f"s_lshl_b32 s{stmp}, s{par_sgpr}, 6\nv_xor_b32 v{vd}, s{stmp}, v{vd}")
    def tr_base_sw(vd, vt, tile_sgpr, stmp, lds_base):
        a(f"v_lshrrev_b32 v{vt}, 2, v1\nv_lshl_add_u32 v{vd}, v2, 3, v{vt}\nv_lshlrev_b32 v{vd}, 7, v{vd}")
        a(f"v_and_b32 v{vt}, 2, v{vt}")
        a(f"v_and_b32 v{vd+1}, 1, v2\nv_lshl_add_u32 v{vt}, v{vd+1}, 2, v{vt}")
        a(f"v_bfe_u32 v{vd+1}, v1, 1, 1\ns_lshl_b32 s{stmp}, s{tile_sgpr}, 1\nv_add_u32 v{vd+1}, s{stmp}, v{vd+1}")
        a(f"v_xor_b32 v{vt}, v{vt}, v{vd+1}\nv_lshl_add_u32 v{vd}, v{vt}, 4, v{vd}")
        a(f"v_and_b32 v{vt}, 1, v1\nv_lshl_add_u32 v{vd}, v{vt}, 3, v{vd}")
        if lds_base: a(f"v_add_u32 v{vd}, {lds_base}, v{vd}")
    def tr_base(vd, rowbytes, vt):
        a(f"v_lshrrev_b32 v{vt}, 2, v1\nv_lshl_add_u32 v{vt}, v2, 3, v{vt}")
        a(f"v_mul_u32_u24 v{vd}, {rowbytes}, v{vt}")
        a(f"v_and_b32 v{vt}, 3, v1\nv_lshl_add_u32 v{vd}, v{vt}, 3, v{vd}")
    def tr_frag(dst, vaddr, vaddr_hi, off, rowbytes):
        for sub in range(2):
            o = off + sub * 4 * rowbytes
            if o > 65535: a(f"ds_read_b64_tr_b16 v[{dst+2*sub}:{dst+2*sub+1}], v{vaddr_hi} offset:{o - 65536}")
            else: a(f"ds_read_b64_tr_b16 v[{dst+2*sub}:{dst+2*sub+1}], v{vaddr} offset:{o}")
    def dma_list(srdreg, voff, gbase_sgpr, lbase_sgpr, items, stmp):
        for (goff, loff) in items:
            a(f"s_add_u32 m0, s{lbase_sgpr}, {loff}")
            a(f"s_add_u32 s{stmp}, s{gbase_sgpr}, {goff}")
            a(f"buffer_load_dwordx4 v{voff}, s[{srdreg}:{srdreg+3}], s{stmp} offen {POL} lds")
    def mask_n2(vaddr, voob):
        a(f"v_cmp_lt_u32 vcc, 1, v1\ns_nop 1\nv_cndmask_b32 v{vaddr}, v{vaddr}, v{voob}, vcc")

    TB = 12; NBIG = 8
    TMAX = TB + (1 if NBIG else 0)
    assert TMAX <= 4 * KSLOT
    A_Q = KSLOT * 4 * 8192
    A_MX = A_Q + 1024
    A_CNT = A_MX + 256
    A_DUM = A_CNT + 256
    Q_W = 65536; Q_H = 131072
    WF = 128; HF = 64; G = 40
    S_R0 = 0; S_R1 = 57344
    S_O = 122880 + 10240; S_H1 = S_O + 512; S_G = S_O + 1024; S_SC = S_G + 4096
    X3SZ = 2 * NJ * WR * 4
    def std_recip(mean, var, t):
        rnd2(mean, var, t)
        a(f"v_add_f32 v{var}, {f32(1e-5)}, v{var}"); rnd1(var)
        a(f"v_sqrt_f32 v{var}, v{var}\ns_nop 0"); rnd1(var)
        a(f"v_rcp_f32 v{var}, v{var}\ns_nop 0")
    def id_poll(name, n):
        a(f"v_min_u32 v20, {n-1}, v0\nv_lshlrev_b32 v20, 4, v20\nv_add_u32 v20, {XID}, v20")
        tmo_init()
        a.label(name)
        a(f"buffer_load_dwordx4 v[{G}:{G+3}], v20, s[4:7], 0 offen sc1\ns_waitcnt vmcnt(0)")
        msad_check([G, G+1, G+2, G+3], 31, 32, 33)
        poll_tail(name)

    def rows_dma(srdreg, gbase_sgpr, lds_base):
        a(f"""
        s_and_b32 s32, s3, 3
        s_lshl_b32 s32, s32, 1
        v_xor_b32 v24, s32, v0
        v_xor_b32 v25, 8, v24
        v_cmp_gt_u32 vcc, 56, v24
        v_lshlrev_b32 v24, 4, v24
        v_cmp_gt_u32 s[34:35], 56, v25
        v_cndmask_b32 v24, v9, v24, vcc
        v_lshlrev_b32 v25, 4, v25
        s_mul_i32 s32, s3, 896
        v_cndmask_b32 v25, v9, v25, s[34:35]
        s_add_u32 s{gbase_sgpr}, s{gbase_sgpr}, s32
        """)
        for i in range(8):
            dma_list(srdreg, 24 + (i & 1), gbase_sgpr, 33, [(i * 8 * 896, lds_base + i * 8192)], 32)
    def rows_frags(dst, lds_base):
        a(f"""
        v_lshrrev_b32 v38, 2, v1
        v_lshl_add_u32 v36, v2, 3, v38
        v_lshlrev_b32 v36, 10, v36
        v_lshlrev_b32 v38, 1, v38
        v_and_b32 v37, 1, v2
        v_lshl_add_u32 v38, v37, 3, v38
        v_bfe_u32 v37, v1, 1, 1
        s_lshl_b32 s32, s3, 1
        v_add_u32 v37, s32, v37
        v_xor_b32 v38, v38, v37
        v_lshl_add_u32 v36, v38, 4, v36
        v_and_b32 v38, 1, v1
        v_lshl_add_u32 v36, v38, 3, v36
        v_add_u32 v36, {lds_base}, v36
        """)
        for ti in range(3):
            for k in range(2): tr_frag(dst + (ti * 2 + k) * 4, 36, 36, k * 32768 + ti * 256, 1024)
        with only("lt", 3, 4):
            for k in range(2): tr_frag(dst + (6 + k) * 4, 36, 36, k * 32768 + 3 * 256, 1024)

    a("""
    s_cmp_ge_u32 s2, 256
    s_cbranch_scc1 L_exit
    s_load_dwordx16 s[64:79], s[0:1], 0
    s_load_dwordx8 s[80:87], s[0:1], 64
    s_load_dwordx2 s[88:89], s[0:1], 96
    """)
    if cfg.STAMPS:
        for k in range(1, 12): a(f"s_mov_b64 s[{SR(k)}:{SR(k)+1}], 0")
        stamp(0)
    if cfg.PADTO: a("s_memrealtime s[40:41]")
    if cfg.CLS:
        a("s_memrealtime s[40:41]")
        with only("ge", 2, 248):
            a("s_waitcnt lgkmcnt(0)")
            srd(8, P_DBG, 256)
            a("""s_and_b32 s32, s2, 7
            s_lshl_b32 s32, s32, 2
            s_getreg_b32 s33, hwreg(HW_REG_XCC_ID, 0, 4)
            v_mov_b32 v1, 0
            v_mov_b32 v2, s40
            v_mov_b32 v3, s33
            buffer_store_dword v2, v1, s[8:11], s32 offen
            buffer_store_dword v3, v1, s[8:11], s32 offen offset:32""")
    a(f"""
    v_lshrrev_b32 v1, 6, v0
    v_and_b32 v0, 63, v0
    s_add_u32 s25, s2, {(8 - cfg.LCLS) & 7}
    s_and_b32 s25, s25, 7
    v_readfirstlane_b32 s3, v1
    v_and_b32 v1, 15, v0
    v_lshrrev_b32 v2, 4, v0
    s_lshr_b32 s24, s2, 3
    v_lshrrev_b32 v24, 3, v0
    v_and_b32 v26, 2, v24
    v_xor_b32 v26, v26, v0
    v_and_b32 v26, 7, v26
    v_lshlrev_b32 v26, 4, v26
    s_and_b32 s30, s3, 1
    s_lshl_b32 s32, s30, 6
    v_xor_b32 v26, s32, v26
    s_lshl_b32 s33, s3, 10
    v_lshlrev_b32 v3, 4, v0
    v_mov_b32 v9, {OOB}
    v_cmp_gt_u32 vcc, 56, v0
    s_cmp_lg_u32 s25, 0
    s_cbranch_scc1 L_notL
    """)
    a(f"""
    s_cmp_ge_u32 s24, 28
    s_cbranch_scc1 {"L_cpf" if cfg.CPF else "L_exit"}
    v_cndmask_b32 v11, v9, v3, vcc
    s_cmp_ge_u32 s24, 14
    s_cselect_b32 s28, 1, 0
    s_mul_i32 s29, s28, 14
    s_sub_u32 s29, s24, s29
    s_lshl_b32 s31, s29, 7
    s_mul_i32 s32, s28, {224*5376}
    s_add_u32 s31, s31, s32
    s_mul_i32 s32, s3, {8*5376}
    s_add_u32 s31, s31, s32
    s_movk_i32 s32, 5376
    v_mul_lo_u32 v25, v24, s32
    v_add_u32 v25, v25, v26
    s_mul_i32 s34, s30, 896
    s_mov_b32 s10, 2408448
    s_mov_b32 s11, 0x20000
    s_mov_b32 s14, 1792
    s_mov_b32 s15, 0x20000
    s_waitcnt lgkmcnt(0)
    s_mov_b32 s8, s{P_WM}
    s_and_b32 s9, s{P_WM+1}, 0xffff
    s_mov_b32 s12, s{P_C}
    s_and_b32 s13, s{P_C+1}, 0xffff
    buffer_load_dwordx4 v[12:15], v11, s[12:15], s34 offen
    """)
    dma_list(8, 25, 31, 33, [(i * 64 * 5376, S_R0 + i * 8192) for i in range(3)], 32)
    with only("lt", 3, 4):
        dma_list(8, 25, 31, 33, [(3 * 64 * 5376, S_R0 + 3 * 8192)], 32)
    a("s_branch L_roleL")
    def q_early():
        a(f"""
        s_and_b32 s38, s24, 1
        s_lshr_b32 s37, s24, 1
        s_lshl_b32 s35, s37, 8
        s_mul_i32 s32, s38, {224*8192}
        s_add_u32 s35, s35, s32
        s_lshl_b32 s32, s3, 15
        s_add_u32 s35, s35, s32
        v_lshlrev_b32 v24, 1, v2
        v_xor_b32 v24, v24, v1
        s_and_b32 s32, s3, 2
        s_lshl_b32 s32, s32, 2
        v_xor_b32 v24, s32, v24
        v_lshlrev_b32 v24, 4, v24
        v_lshl_add_u32 v24, v2, 13, v24
        s_mov_b32 s10, 3670016
        s_mov_b32 s11, 0x20000
        v_cndmask_b32 v31, v9, v3, vcc
        v_cndmask_b32 v39, 0, 1.0, vcc
        s_mul_i32 s32, s30, 896
        v_min_u32 v28, 55, v0
        v_lshlrev_b32 v28, 2, v28
        s_mul_i32 s34, s38, 224
        v_add_u32 v30, s34, v28
        v_lshlrev_b32 v30, 1, v30
        s_mov_b32 s18, 1792
        s_mov_b32 s19, 0x20000
        s_waitcnt lgkmcnt(0)
        s_mov_b32 s16, s{P_X}
        s_and_b32 s17, s{P_X+1}, 0xffff
        s_mov_b32 s8, s{P_WQ}
        s_and_b32 s9, s{P_WQ+1}, 0xffff
        buffer_load_dwordx4 v[16:19], v31, s[16:19], s32 offen
        buffer_load_dwordx2 v[20:21], v30, s[16:19], s32 offen
        """)
        srd(4, P_WS, 0x10000000)
        a(f"""
        v_mov_b32 v4, -1
        v_mov_b32 v5, -1
        v_mov_b32 v6, -1
        v_mov_b32 v7, -1
        v_lshlrev_b32 v15, 2, v0
        s_mul_i32 s28, s24, {X3SZ}
        s_add_u32 s28, s28, {X3}
        s_lshl_b32 s29, s24, 8
        s_add_u32 s29, s29, {ML}
        s_add_u32 s32, s33, s28
        """)
        with only("lt", 3, X3SZ // 1024):
            a("buffer_store_dwordx4 v[4:7], v3, s[4:7], s32 offen sc1")
        with only("eq", 3, 5):
            a("buffer_store_dword v4, v15, s[4:7], s29 offen sc1")
        dma_list(8, 24, 35, 33, [(i * 32 * 8192, Q_W + i * 8192) for i in range(7)], 32)
        a("s_branch L_roleQ")
    if cfg.ORDER == 'LQA':
        a.label("L_notL")
        a(f"""
        s_mul_i32 s24, s24, 7
        s_add_u32 s24, s24, s25
        s_sub_u32 s24, s24, 1
        s_mov_b32 s39, 0
        s_cmp_ge_u32 s24, 64
        s_cbranch_scc1 L_A_nm0
        """)
        q_early()
    else:
        a.label("L_notL")
        a(f"""
        s_mul_i32 s24, s24, 7
        s_add_u32 s24, s24, s25
        s_sub_u32 s24, s24, 1
        s_mov_b32 s39, 0
        s_cmp_lt_u32 s24, 64
        s_cbranch_scc1 L_Q_early
        """)
    if cfg.CPF:
        a.label("L_cpf")
        a(f"""
        s_getpc_b64 s[8:9]
        L_pc:
        s_sub_u32 s8, s8, L_pc-{NAME}_kernel
        s_subb_u32 s9, s9, 0
        s_and_b32 s9, s9, 0xffff
        s_mov_b32 s10, L_exit+4-{NAME}_kernel
        s_mov_b32 s11, 0x20000
        """)
        for i in range(5):
            a(f"s_mov_b32 s32, {i*4096}")
            for k in range(4):
                a(f"buffer_load_dwordx4 v[{16+16*i+4*k}:{19+16*i+4*k}], v3, s[8:11], s32 offen offset:{k*1024}")
        a("s_endpgm")
    a.label("L_A_nm0")
    if cfg.CPF:
        a("s_cmp_lg_u32 s3, 7\ns_cbranch_scc1 L_A_nm\ns_cmp_lt_u32 s24, 78\ns_cbranch_scc1 L_cpf\ns_endpgm")
    a.label("L_A_nm")
    a(f"""
    s_sub_u32 s24, s24, 64
    s_mul_i32 s26, s24, 6554
    s_lshr_b32 s26, s26, 16
    s_mul_i32 s27, s26, 10
    s_sub_u32 s27, s24, s27
    s_mul_i32 s28, s27, {TB}
    s_min_u32 s29, s27, {NBIG}
    s_add_u32 s28, s28, s29
    s_cmp_lt_u32 s27, {NBIG}
    s_cselect_b32 s29, {TB+1}, {TB}
    L_A_par:
    s_lshl_b32 s28, s28, 13
    s_lshl_b32 s32, s26, 22
    s_add_u32 s28, s28, s32
    s_add_u32 s28, s28, {6144*512}
    s_cmp_ge_u32 s3, 4
    s_cbranch_scc1 L_A_other
    v_lshrrev_b32 v3, 5, v0
    v_and_b32 v4, 31, v0
    v_xor_b32 v4, v4, v3
    v_lshlrev_b32 v4, 4, v4
    v_lshl_add_u32 v8, v3, 9, v4
    """)
    for kp in range(1, 8): a(f"v_xor_b32 v{8+kp}, {kp << 5}, v8")
    a(f"""s_lshl_b32 s36, s3, 13
    s_add_u32 s36, s36, s28
    s_mul_i32 s31, s3, {KSLOT*8192}
    s_waitcnt lgkmcnt(0)
    """)
    srd(12, P_K, 0x4000000)
    def k_issue(throttle, nslot):
        n = 0
        for tt in range(nslot):
            lab = a.newlabel("L_kskip")
            if tt: a(f"s_add_u32 s32, s3, {tt*4}\ns_cmp_ge_u32 s32, s29\ns_cbranch_scc1 {lab}")
            for hf in range(2):
                a(f"s_add_u32 m0, s31, {tt*8192 + hf*4096}")
                a(f"s_add_u32 s32, s36, {tt*4*8192 + hf*4096}")
                for k4 in range(4):
                    dk = cfg.DK1 if n < cfg.NK1 else cfg.DK
                    if throttle and n >= dk: a(f"s_waitcnt vmcnt({dk-1})")
                    if not cfg.NOKV: a(f"buffer_load_dwordx4 v{8 + hf*4 + k4}, s[12:15], s32 offen offset:{k4*1024} {POL} lds")
                    n += 1
            a.label(lab)
    k_issue(True, KSLOT)
    if cfg.ORDER != 'LQA':
        a("s_branch L_AK_go")
        a.label("L_Q_early")
        q_early()
        a.label("L_AK_go")
    stamp(1)
    a("s_barrier")
    a.label("L_AK_post")
    srd(4, P_WS, 0x10000000)
    a(f"""
    s_mul_i32 s31, s3, {KSLOT*8192}
    v_xor_b32 v3, v1, v2
    v_lshlrev_b32 v3, 4, v3
    v_lshl_add_u32 v3, v1, 9, v3
    v_add_u32 v4, s31, v3
    v_xor_b32 v5, 64, v4
    v_xor_b32 v6, 0x80, v4
    v_xor_b32 v7, 0xc0, v4
    v_lshrrev_b32 v8, 3, v1
    v_lshlrev_b32 v9, 9, v8
    v_lshl_add_u32 v9, v2, 4, v9
    v_add_u32 v9, {A_Q}, v9
    s_lshl_b32 s32, s3, 4
    v_lshlrev_b32 v10, 6, v8
    v_lshl_add_u32 v11, v2, 2, v10
    v_add_u32 v11, s32, v11
    v_add_u32 v11, {A_MX}, v11
    v_add_u32 v10, {A_MX}, v10
    v_lshlrev_b32 v12, 4, v0
    v_add_u32 v12, s31, v12
    s_mov_b32 s33, {f32(LOG2E / 16.0)}
    v_mov_b32 v28, {A_CNT}
    v_cmp_eq_u32 vcc, 0, v0
    v_lshlrev_b32 v31, 2, v0
    v_add_u32 v31, {A_DUM}, v31
    v_cndmask_b32 v29, 0, 1, vcc
    v_cndmask_b32 v31, v31, v28, vcc
    v_bfe_u32 v14, v1, 1, 2
    v_and_b32 v15, 1, v1
    v_mov_b32 v16, 0xffff
    v_lshlrev_b32 v15, 4, v15
    v_lshlrev_b32 v15, v15, v16
    """)
    KF = 64; QF = 32; SC = 192; MK = 208; AO = 212
    a(f"v_and_b32 v14, 7, v1\nv_lshl_add_u32 v{MK}, v14, 1, v12")
    for j in range(4): a(f"v_mov_b32 v{AO+j}, 0")
    FPH = 256 // WR
    a(f"""
    s_lshr_b32 s34, s26, 3
    s_and_b32 s35, s26, 7
    s_lshl_b32 s35, s35, 1
    v_add_u32 v13, s35, v8
    v_mul_u32_u24 v13, {FPH}, v13
    v_add_u32 v13, v13, v2
    v_lshlrev_b32 v13, 1, v13
    v_add_u32 v13, s34, v13
    v_lshlrev_b32 v13, 4, v13
    v_add_u32 v13, s27, v13
    v_lshlrev_b32 v13, 3, v13
    v_add_u32 v13, {ML}, v13
    v_and_b32 v14, 7, v1
    v_cmp_ne_u32 vcc, 0, v14
    v_cmp_le_u32 s[36:37], {FPH}, v2
    s_or_b64 vcc, vcc, s[36:37]
    v_mov_b32 v14, {OOB}
    s_nop 0
    v_cndmask_b32 v13, v13, v14, vcc
    """)
    dry_begin("L_AK")
    for tt in range(KSLOT):
        for r in range(4): a(f"v_mov_b32 v{SC+4*tt+r}, 0xff800000")
    lds_wait(28, 0, 1, 30)
    stamp(3)
    for i in range(8):
        a(f"ds_read_b128 v[{QF+4*i}:{QF+4*i+3}], v9 offset:{i*64}")
    for tt in range(KSLOT):
        lab = a.newlabel("L_qk")
        if tt: a(f"s_add_u32 s32, s3, {4*tt}\ns_cmp_ge_u32 s32, s29\ns_cbranch_scc1 {lab}")
        for i in range(8):
            if tt == 0: a(f"s_waitcnt lgkmcnt({7-i})")
            c = "0" if i == 0 else f"v[{SC+4*tt}:{SC+4*tt+3}]"
            a(f"{MF} v[{SC+4*tt}:{SC+4*tt+3}], v[{KF+tt*32+4*i}:{KF+tt*32+4*i+3}], v[{QF+4*i}:{QF+4*i+3}], {c}")
        a.label(lab)
    nop(8)
    T = 14
    for tt in range(KSLOT):
        rnd2(SC+4*tt, SC+4*tt+1, T); rnd2(SC+4*tt+2, SC+4*tt+3, T+1)
    regs = [SC + i for i in range(4 * KSLOT)]
    a(f"v_max3_f32 v{T}, v{regs[0]}, v{regs[1]}, v{regs[2]}\nv_max3_f32 v{T+1}, v{regs[3]}, v{regs[4]}, v{regs[5]}")
    a(f"v_max3_f32 v{T}, v{T}, v{regs[6]}, v{regs[7]}\nv_max3_f32 v{T+1}, v{T+1}, v{regs[8]}, v{regs[9]}")
    a(f"v_max3_f32 v{T}, v{T}, v{regs[10]}, v{regs[11]}\nv_max3_f32 v{T+1}, v{T+1}, v{regs[12]}, v{regs[13]}")
    a(f"v_max3_f32 v{T}, v{T}, v{regs[14]}, v{regs[15]}\nv_max_f32 v{T}, v{T}, v{T+1}")
    a(f"ds_write_b32 v11, v{T}")
    lds_signal(31, 4, 29)
    lds_wait(28, 4, 4, 30)
    for i in range(4):
        a(f"ds_read_b128 v[{QF+4*i}:{QF+4*i+3}], v10 offset:{i*16}")
    a("s_waitcnt lgkmcnt(0)")
    a(f"v_max3_f32 v{T}, v{QF}, v{QF+1}, v{QF+2}\nv_max3_f32 v{T+1}, v{QF+3}, v{QF+4}, v{QF+5}")
    a(f"v_max3_f32 v{T}, v{T}, v{QF+6}, v{QF+7}\nv_max3_f32 v{T+1}, v{T+1}, v{QF+8}, v{QF+9}")
    a(f"v_max3_f32 v{T}, v{T}, v{QF+10}, v{QF+11}\nv_max3_f32 v{T+1}, v{T+1}, v{QF+12}, v{QF+13}")
    a(f"v_max3_f32 v{T}, v{T}, v{QF+14}, v{QF+15}\nv_max_f32 v{T}, v{T}, v{T+1}")
    a(f"v_mul_f32 v{QF+16}, s33, v{T}")
    for r in regs: a(f"v_fma_f32 v{r}, v{r}, s33, -v{QF+16}")
    for r in regs: a(f"v_exp_f32 v{r}, v{r}")
    for tt in range(KSLOT):
        a(f"v_cvt_pk_bf16_f32 v{QF+2*tt}, v{SC+4*tt}, v{SC+4*tt+1}\nv_cvt_pk_bf16_f32 v{QF+2*tt+1}, v{SC+4*tt+2}, v{SC+4*tt+3}")
        a(f"ds_write_b16 v{MK}, v{QF+2*tt} offset:{tt*8192}\nds_write_b16_d16_hi v{MK}, v{QF+2*tt} offset:{tt*8192+1024}")
        a(f"ds_write_b16 v{MK}, v{QF+2*tt+1} offset:{tt*8192+2048}\nds_write_b16_d16_hi v{MK}, v{QF+2*tt+1} offset:{tt*8192+3072}")
    a(f"v_add_f32 v{T}, v{regs[0]}, v{regs[1]}\nv_add_f32 v{T+1}, v{regs[2]}, v{regs[3]}")
    for i in range(4, len(regs), 2):
        a(f"v_add_f32 v{T}, v{T}, v{regs[i]}\nv_add_f32 v{T+1}, v{T+1}, v{regs[i+1]}")
    a(f"v_add_f32 v{T}, v{T}, v{T+1}")
    a(f"ds_write_b32 v11, v{T} offset:128")
    lds_signal(31, 8, 29)
    stamp(4)
    with only("eq", 3, 0):
        lds_wait(28, 8, 4, 30)
        for i in range(4):
            a(f"ds_read_b128 v[{QF+4*i}:{QF+4*i+3}], v10 offset:{128+i*16}")
        a("s_waitcnt lgkmcnt(0)")
        for i in range(8): a(f"v_add_f32 v{QF+i}, v{QF+i}, v{QF+8+i}")
        for i in range(4): a(f"v_add_f32 v{QF+i}, v{QF+i}, v{QF+4+i}")
        a(f"v_add_f32 v{QF}, v{QF}, v{QF+2}\nv_add_f32 v{QF+1}, v{QF+1}, v{QF+3}\nv_add_f32 v{QF+17}, v{QF}, v{QF+1}")
        with vmem():
            a(f"buffer_store_dwordx2 v[{QF+16}:{QF+17}], v13, s[4:7], 0 offen sc1")
    dry_mid("L_AK")
    a("s_waitcnt vmcnt(0)")
    stamp(2)
    for tt in range(KSLOT):
        for i in range(8):
            if cfg.NOKV:
                for r in range(4): a(f"v_mov_b32 v{KF+tt*32+4*i+r}, 0")
            else: a(f"ds_read_b128 v[{KF+tt*32+4*i}:{KF+tt*32+4*i+3}], v{4 + (i & 3)} offset:{tt*8192 + (i >> 2)*256}")
    a("s_waitcnt lgkmcnt(0)")
    for tt in range(KSLOT):
        for r in range(4): a(f"ds_write_b128 v12, v[{AO}:{AO+3}] offset:{tt*8192 + r*1024}")
    dry_end("L_AK")
    end_wave()

    a.label("L_A_other")
    a("s_waitcnt lgkmcnt(0)")
    a.label("L_A_other2")
    srd(4, P_WS, 0x10000000)
    a("s_cmp_ge_u32 s3, 6\ns_cbranch_scc1 L_A_poll")
    srd(8, P_V, 0x4000000)
    VD = 256 - TMAX * 16
    ACC = 8; NAO = 8; AOP = 16
    assert AOP + 4 * NAO <= VD
    a(f"""
    s_sub_u32 s30, s3, 4
    s_lshl_b32 s31, s30, 8
    s_add_u32 s28, s28, s31
    v_lshlrev_b32 v3, 11, v2
    v_lshl_add_u32 v3, v1, 4, v3
    v_lshlrev_b32 v4, 4, v0
    v_add_u32 v7, {2*KSLOT*8192}, v4
    v_mov_b32 v12, {A_CNT}
    s_lshr_b32 s34, s26, 3
    s_and_b32 s35, s26, 7
    s_lshl_b32 s35, s35, 9
    s_lshl_b32 s31, s30, 7
    s_add_u32 s35, s35, s31
    v_lshrrev_b32 v5, 1, v2
    v_lshlrev_b32 v5, 8, v5
    v_lshl_add_u32 v5, v1, 3, v5
    v_and_b32 v6, 1, v2
    v_lshl_add_u32 v5, v6, 2, v5
    v_add_u32 v5, s35, v5
    v_lshrrev_b32 v6, {WR.bit_length()-1}, v5
    v_and_b32 v5, {WR-1}, v5
    v_lshlrev_b32 v6, 1, v6
    v_add_u32 v6, s34, v6
    v_mul_u32_u24 v6, {NJ}, v6
    v_add_u32 v6, s27, v6
    v_mul_u32_u24 v6, {WR}, v6
    v_add_u32 v5, v5, v6
    v_lshlrev_b32 v5, 2, v5
    v_add_u32 v5, {X3}, v5
    """)
    order = list(range(TMAX - 1, -1, -1))
    NL = 4 * TMAX
    def aop_read(t, r):
        w, tt = t & 3, t >> 2
        off = ((w & 1) * KSLOT + tt) * 8192 + r * 1024
        slot = (t * 4 + r) % NAO
        a(f"ds_read_b128 v[{AOP+4*slot}:{AOP+4*slot+3}], v{4 if w < 2 else 7} offset:{off}")
    dry_begin("L_AV")
    for r in range(4): a(f"v_mov_b32 v{ACC+r}, 0")
    lds_wait(12, 8, 4, 13)
    stamp(3)
    entry = {}
    for nt in sorted({TB, TMAX}, reverse=True):
        entry[nt] = a.newlabel("L_pv")
    nts = sorted(entry.keys(), reverse=True)
    for nt in nts[1:]:
        with only("eq", 29, nt):
            for r in range(4): aop_read(nt - 1, r)
            a(f"s_branch {entry[nt]}")
    for r in range(4): aop_read(TMAX - 1, r)
    for oi, t in enumerate(order):
        if t + 1 in entry: a.label(entry[t + 1])
        if t > 0:
            for r in range(4): aop_read(t - 1, r)
        for r in range(4):
            remaining = t * 4 + (3 - r)
            lg = (4 if t > 0 else 0) + (3 - r)
            if remaining < cfg.DV: a(f"s_waitcnt vmcnt({remaining}) lgkmcnt({lg})")
            else: a(f"s_waitcnt lgkmcnt({lg})")
            vd = VD + t * 16 + r * 4
            slot = (t * 4 + r) % NAO
            a(f"{MF} v[{ACC}:{ACC+3}], v[{AOP+4*slot}:{AOP+4*slot+3}], v[{vd}:{vd+3}], v[{ACC}:{ACC+3}]")
    stamp(4)
    nop(8)
    with vmem():
        a(f"buffer_store_dwordx4 v[{ACC}:{ACC+3}], v5, s[4:7], 0 offen sc1")
    dry_mid("L_AV")
    a("s_barrier")
    a.label("L_AV_post")
    stamp(1)
    n = 0
    for oi, t in enumerate(order):
        lab = None
        if t >= min(nts):
            lab = a.newlabel("L_vskip")
            a(f"s_cmp_le_u32 s29, {t}\ns_cbranch_scc1 {lab}")
        a(f"s_add_u32 s32, s28, {t*8192}")
        for r in range(4):
            vd = VD + t * 16 + r * 4
            if n >= cfg.DV: a(f"s_waitcnt vmcnt({cfg.DV-1})")
            if cfg.NOKV: a(f"v_mov_b32 v{vd}, 0\nv_mov_b32 v{vd+1}, 0\nv_mov_b32 v{vd+2}, 0\nv_mov_b32 v{vd+3}, 0")
            else: a(f"buffer_load_dwordx4 v[{vd}:{vd+3}], v3, s[8:11], s32 offen offset:{r*512} {POL}")
            n += 1
        if lab: a.label(lab)
    stamp(2)
    dry_end("L_AV")
    if cfg.STAMPS: a("s_waitcnt vmcnt(0)"); stamp(5)
    end_wave()

    a.label("L_A_poll")
    a("s_cmp_lg_u32 s3, 6\ns_cbranch_scc1 L_exit")
    epoch_load()
    tags_ready()
    a(f"""
    s_lshl_b32 s30, s26, 11
    s_add_u32 s30, s30, {X2}
    v_lshlrev_b32 v3, 4, v0
    v_lshlrev_b32 v4, 3, v0
    v_add_u32 v4, {A_Q}, v4
    v_mov_b32 v12, {A_CNT}
    v_mov_b32 v13, 1
    v_mov_b32 v5, s{S_TAG8}
    s_add_u32 s31, s30, 32768
    """)
    if True:
        a("v_mov_b32 v8, 0\nv_mov_b32 v9, 0\nv_mov_b32 v10, 0\nv_mov_b32 v11, 0\nds_write_b128 v12, v[8:11]\ns_waitcnt lgkmcnt(0)\ns_barrier")
    tmo_init()
    NP = cfg.NP
    def qload(k):
        b0 = 16 + 16 * k
        a(f"buffer_load_dwordx4 v[{b0}:{b0+3}], v3, s[4:7], s30 offen sc1")
        a(f"buffer_load_dwordx4 v[{b0+4}:{b0+7}], v3, s[4:7], s30 offen offset:1024 sc1")
        a(f"buffer_load_dwordx4 v[{b0+8}:{b0+11}], v3, s[4:7], s31 offen sc1")
        a(f"buffer_load_dwordx4 v[{b0+12}:{b0+15}], v3, s[4:7], s31 offen offset:1024 sc1")
    if cfg.SPROBE:
        a(f"s_add_u32 s34, s{P_WS}, s30\ns_addc_u32 s35, s{P_WS+1}, 0")
        a.label("L_sprobe")
        for k in range(8):
            a(f"s_load_dword s{16+k}, s[34:35], {(k & 1) * 32768 + (k >> 1) * 512 + 508} glc")
        a("s_waitcnt lgkmcnt(0)")
        a("s_xor_b32 s32, s16, s17")
        for k in range(2, 8): a(f"s_xor_b32 s33, s16, s{16+k}\ns_or_b32 s32, s32, s33")
        a(f"s_xor_b32 s33, s16, s{S_TAG8}\ns_or_b32 s32, s32, s33\ns_and_b32 s32, s32, 0xff")
        a(f"s_cbranch_scc0 L_spdone\ns_sub_u32 s{S_TMO}, s{S_TMO}, 1\ns_cbranch_scc0 L_sprobe")
        a.label("L_spdone")
        tmo_init()
    for k in range(NP - 1):
        qload(k); a("s_sleep 8")
    a.label("L_qpoll")
    for k in range(NP):
        qload((k + NP - 1) % NP)
        a(f"s_waitcnt vmcnt({4*(NP-1)})")
        msad_check([16 + 16*k + i for i in range(16)], 5, 6, 7)
        a(f"s_cbranch_vccz L_qgot{k}")
        if cfg.QSLEEP: a(f"s_sleep {cfg.QSLEEP}")
    a(f"s_sub_u32 s{S_TMO}, s{S_TMO}, 1\ns_cbranch_scc0 L_qpoll")
    for k in range(NP):
        a.label(f"L_qgot{k}")
        b0 = 16 + 16 * k
        for i in range(16): a(f"v_and_b32 v{b0+i}, 0xffffff00, v{b0+i}")
        for i in range(0, 8, 2): a(f"v_pk_add_f32 v[{b0+i}:{b0+i+1}], v[{b0+i}:{b0+i+1}], v[{b0+8+i}:{b0+9+i}]")
        for i in range(4): a(f"v_cvt_pk_bf16_f32 v{8+i}, v{b0+2*i}, v{b0+2*i+1}")
        if k < NP - 1: a("s_branch L_qwr")
    a.label("L_qwr")
    a("ds_write_b64 v4, v[8:9]\nds_write_b64 v4, v[10:11] offset:512\ns_waitcnt lgkmcnt(0)\nds_write_b32 v12, v13")
    stamp(4)
    end_wave()

    a.label("L_roleQ")
    stamp(1)
    epoch_load()
    a(f"""
    v_mov_b32 v29, 0xffffff00
    v_and_b32 v27, 1, v1
    v_lshlrev_b32 v27, 9, v27
    v_lshl_add_u32 v27, v2, 4, v27
    v_add_u32 v27, {Q_H}, v27
    s_lshl_b32 s32, s3, 6
    s_lshl_b32 s31, s37, 9
    s_add_u32 s32, s32, s31
    s_lshl_b32 s31, s38, 15
    s_add_u32 s32, s32, s31
    s_add_u32 s32, s32, {X2}
    v_lshlrev_b32 v26, 14, v1
    v_lshl_add_u32 v26, v2, 4, v26
    v_add_u32 v26, s32, v26
    v_lshrrev_b32 v38, 2, v1
    v_lshl_add_u32 v36, v2, 3, v38
    v_lshlrev_b32 v36, 8, v36
    v_lshlrev_b32 v38, 1, v38
    v_and_b32 v37, 1, v2
    v_lshl_add_u32 v38, v37, 3, v38
    v_bfe_u32 v37, v1, 1, 1
    s_lshl_b32 s32, s3, 1
    v_add_u32 v37, s32, v37
    v_xor_b32 v38, v38, v37
    v_lshl_add_u32 v36, v38, 4, v36
    v_and_b32 v38, 1, v1
    v_lshl_add_u32 v36, v38, 3, v36
    v_add_u32 v36, {Q_W}, v36
    s_mul_i32 s32, s30, {896*4}
    s_add_u32 s32, s32, {X1}
    s_add_u32 s35, s32, {2*896*4}
    v_lshlrev_b32 v8, 1, v30
    s_lshl_b32 s34, s30, 9
    v_lshlrev_b32 v10, 1, v28
    v_add_u32 v10, s34, v10
    v_add_u32 v10, {Q_H}, v10
    """)
    mask_n2(26, 9)
    XN = 16
    with only("ge", 3, 6):
        a(f"""
        s_waitcnt vmcnt(7)
        """)
        XR = 48
        for i in range(4):
            a(f"v_lshlrev_b32 v{XR+2*i}, 16, v{16+i}\nv_and_b32 v{XR+2*i+1}, 0xffff0000, v{16+i}")
        r = [XR + i for i in range(8)]
        a(f"v_add_f32 v32, v{r[0]}, v{r[1]}\nv_add_f32 v33, v{r[2]}, v{r[3]}\nv_add_f32 v32, v32, v{r[4]}\nv_add_f32 v33, v33, v{r[5]}")
        a(f"v_add_f32 v32, v32, v{r[6]}\nv_add_f32 v33, v33, v{r[7]}\nv_add_f32 v32, v32, v33")
        rowsum([32]); xrow([32], [33])
        a(f"v_mul_f32 v32, {f32(1.0/448)}, v32")
        a(f"v_sub_f32 v33, v{r[0]}, v32\nv_mul_f32 v34, v33, v33")
        for i in range(1, 8): a(f"v_sub_f32 v33, v{r[i]}, v32\nv_fmac_f32 v34, v33, v33")
        a("v_mul_f32 v34, v34, v39")
        rowsum([34]); xrow([34], [33])
        a(f"v_mul_f32 v34, {f32(1.0/448)}, v34")
        std_recip(32, 34, 33)
        a(f"v_lshlrev_b32 v{XN}, 16, v20\nv_and_b32 v{XN+1}, 0xffff0000, v20\nv_lshlrev_b32 v{XN+2}, 16, v21\nv_and_b32 v{XN+3}, 0xffff0000, v21")
        for i in range(4): a(f"v_sub_f32 v{XN+i}, v{XN+i}, v32")
        rnd2(XN, XN+1, 38); rnd2(XN+2, XN+3, 38)
        for i in range(4): a(f"v_mul_f32 v{XN+i}, v{XN+i}, v34")
        rnd2(XN, XN+1, 38); rnd2(XN+2, XN+3, 38)
    tags_ready()
    a(f"v_mov_b32 v30, s{S_TAG8}\nv_mov_b32 v31, s{S_TAG16}")
    dry_begin("L_Q")
    with only("ge", 3, 6):
        def x1loads():
            a(f"buffer_load_dwordx4 v[{G}:{G+3}], v8, s[4:7], s32 offen sc1")
            a(f"buffer_load_dwordx4 v[{G+4}:{G+7}], v8, s[4:7], s32 offen offset:1792 sc1")
            a(f"buffer_load_dwordx4 v[{G+8}:{G+11}], v8, s[4:7], s35 offen sc1")
            a(f"buffer_load_dwordx4 v[{G+12}:{G+15}], v8, s[4:7], s35 offen offset:1792 sc1")
        tmo_init()
        a("s_branch L_x1chk")
        a.label("L_x1poll")
        with vmem():
            x1loads()
        a.label("L_x1chk")
        with vmem():
            a("s_waitcnt vmcnt(0)")
        msad_check([G + i for i in range(16)], 30, 32, 33)
        poll_tail("L_x1poll")
        stamp(6)
        for i in range(16): a(f"v_and_b32 v{G+i}, 0xffffff00, v{G+i}")
        for i in range(0, 8, 2): a(f"v_pk_add_f32 v[{G+i}:{G+i+1}], v[{G+i}:{G+i+1}], v[{G+8+i}:{G+9+i}]")
        rnd2(G, G+1, 32); rnd2(G+2, G+3, 33); rnd2(G+4, G+5, 34); rnd2(G+6, G+7, 35)
        for i in range(4): a(f"v_add_f32 v{G+4+i}, 1.0, v{G+4+i}")
        rnd2(G+4, G+5, 34); rnd2(G+6, G+7, 35)
        for i in range(4): a(f"v_mul_f32 v{G+4+i}, v{G+4+i}, v{XN+i}")
        rnd2(G+4, G+5, 34); rnd2(G+6, G+7, 35)
        for i in range(4): a(f"v_add_f32 v{G+i}, v{G+i}, v{G+4+i}")
        a(f"v_cvt_pk_bf16_f32 v32, v{G}, v{G+1}\nv_cvt_pk_bf16_f32 v33, v{G+2}, v{G+3}")
        a("ds_write_b64 v10, v[32:33]\ns_waitcnt lgkmcnt(0)")
    barrier()
    for i in range(7):
        a(f"ds_read_b128 v[{HF+4*i}:{HF+4*i+3}], v27 offset:{i*64}")
    for i in range(7):
        a(f"s_waitcnt lgkmcnt({6-i})")
        c = "0" if i == 0 else "v[32:35]"
        a(f"{MF} v[32:35], v[{WF+4*i}:{WF+4*i+3}], v[{HF+4*i}:{HF+4*i+3}], {c}")
    nop(8)
    for r in range(4): a(f"v_add_u32 v{32+r}, 0x80, v{32+r}")
    for r in range(4): a(f"v_and_or_b32 v{32+r}, v{32+r}, v29, v30")
    with vmem():
        a("buffer_store_dwordx4 v[32:35], v26, s[4:7], 0 offen sc1")
    stamp(7)
    dry_mid("L_Q")
    a("s_waitcnt vmcnt(0)")
    with only("ge", 3, 6):
        x1loads()
    a("s_barrier")
    stamp(5)
    for i in range(7): tr_frag(WF + 4 * i, 36, 36, i * 8192, 256)
    a("s_waitcnt lgkmcnt(0)")
    dry_end("L_Q")
    a.label("L_Q_end")
    a("s_barrier")
    WOF = 128; W1F = 192; W2F = 96
    srd(12, P_WO, 3670016)
    a(f"s_mul_i32 s31, s24, {WR*896}")
    rows_dma(12, 31, 0)
    a("s_mov_b32 s38, 0\ns_mov_b32 s25, s28\nv_mov_b32 v22, v9\nv_mov_b32 v23, v9\nv_bfe_u32 v16, v0, 2, 1\nv_and_b32 v17, 3, v0")
    a("s_branch L_back")

    a.label("L_roleL")
    stamp(1)
    srd(4, P_WS, 0x10000000)
    epoch_load()
    a(f"""
    v_mov_b32 v4, -1
    v_mov_b32 v5, -1
    v_mov_b32 v6, -1
    v_mov_b32 v7, -1
    s_lshl_b32 s37, s24, 12
    s_add_u32 s37, s37, {X5}
    s_lshl_b32 s36, s24, 13
    s_add_u32 s36, s36, {X4A}
    s_add_u32 s32, s33, s36
    buffer_store_dwordx4 v[4:7], v3, s[4:7], s32 offen sc1
    v_bfe_u32 v16, v0, 2, 1
    v_and_b32 v17, 3, v0
    v_bfe_u32 v18, v0, 3, 1
    v_lshl_add_u32 v19, v18, 1, v16
    v_lshlrev_b32 v22, 5, v19
    v_lshl_add_u32 v22, v17, 3, v22
    s_lshl_b32 s32, s24, 7
    v_add_u32 v22, s32, v22
    v_lshl_add_u32 v19, v16, 1, v18
    v_lshlrev_b32 v23, 5, v19
    v_lshl_add_u32 v23, v17, 3, v23
    v_add_u32 v23, s32, v23
    v_cmp_lt_u32 vcc, 15, v0
    v_add_u32 v22, {X4B}, v22
    v_add_u32 v23, {XST}, v23
    v_cndmask_b32 v22, v22, v9, vcc
    v_cndmask_b32 v23, v23, v9, vcc
    """)
    with only("ge", 3, 4):
        a("s_add_u32 s32, s33, s37\ns_sub_u32 s32, s32, 4096\nbuffer_store_dwordx4 v[4:7], v3, s[4:7], s32 offen sc1")
    with only("eq", 3, 7):
        a("buffer_store_dwordx2 v[4:5], v22, s[4:7], 0 offen sc1\nbuffer_store_dwordx2 v[4:5], v23, s[4:7], 0 offen sc1")
    a(f"""
    s_and_b32 s34, s3, 3
    v_and_b32 v27, 1, v1
    v_lshlrev_b32 v27, 10, v27
    v_lshl_add_u32 v27, v2, 4, v27
    v_add_u32 v27, {S_SC}, v27
    s_mul_i32 s35, s28, {2*896*4}
    s_lshl_b32 s32, s29, 8
    s_add_u32 s35, s35, s32
    s_add_u32 s35, s35, {X1}
    s_lshl_b32 s32, s24, 9
    s_add_u32 s32, s32, {X0L}
    s_movk_i32 s31, {896*4}
    s_cmp_ge_u32 s3, 4
    s_cselect_b32 s35, s32, s35
    s_cselect_b32 s31, 256, s31
    s_lshl_b32 s32, s34, 6
    s_add_u32 s35, s35, s32
    v_mul_u32_u24 v28, s31, v1
    v_lshl_add_u32 v28, v2, 4, v28
    v_add_u32 v28, s35, v28
    s_mul_i32 s32, s28, 448
    v_add_u32 v8, s32, v27
    s_lshl_b32 s31, s30, 10
    s_add_u32 s31, s31, {S_SC}
    v_add_u32 v10, s31, v3
    v_mov_b32 v29, 0xffff0000
    v_mov_b32 v21, 0xffffff00
    """)
    mask_n2(28, 9)
    tr_base_sw(36, 38, 34, 32, 0)
    tags_ready()
    a(f"v_mov_b32 v30, s{S_TAG8}\nv_mov_b32 v31, s{S_TAG16}")
    a("s_cmp_ge_u32 s3, 4\ns_cbranch_scc1 L_Mskip")
    dry_begin("L_M1")
    with only("lt", 3, 2):
        with vmem():
            a("s_waitcnt vmcnt(5)")
        for i in range(4):
            a(f"v_lshlrev_b32 v{40+2*i}, 16, v{12+i}\nv_and_b32 v{41+2*i}, 0xffff0000, v{12+i}")
        silu(list(range(40, 48)), list(range(48, 56)))
        for i in range(4): a(f"v_cvt_pk_bf16_f32 v{48+i}, v{40+2*i}, v{41+2*i}")
        a("ds_write_b128 v10, v[48:51]")
    with vmem():
        a("s_waitcnt vmcnt(1) lgkmcnt(0)")
    barrier()
    stamp(5)
    for i in range(7):
        tr_frag(WF + 4 * i, 36, 36, S_R0 + i * 4096, 128)
        a(f"ds_read_b128 v[{HF+4*i}:{HF+4*i+3}], v8 offset:{i*64}")
    for i in range(7):
        a(f"s_waitcnt lgkmcnt({min(15, 3*(6-i))})")
        c = "0" if i == 0 else "v[32:35]"
        a(f"{MF} v[32:35], v[{WF+4*i}:{WF+4*i+3}], v[{HF+4*i}:{HF+4*i+3}], {c}")
    nop(8)
    for r in range(4): a(f"v_add_u32 v{32+r}, 0x80, v{32+r}")
    for r in range(4): a(f"v_and_or_b32 v{32+r}, v{32+r}, v21, v30")
    with vmem():
        a("buffer_store_dwordx4 v[32:35], v28, s[4:7], 0 offen sc1")
    stamp(6)
    dry_mid("L_M1")
    dry_end("L_M1")
    a("s_waitcnt vmcnt(1)\ns_branch L_L2")
    a.label("L_Mskip")
    a("s_waitcnt vmcnt(0)\ns_barrier")
    a.label("L_L2")
    a(f"""
    s_getreg_b32 s31, hwreg(HW_REG_XCC_ID, 0, 4)
    s_lshl_b32 s31, s31, 16
    s_or_b32 s31, s31, s{S_TAG16}
    v_mov_b32 v56, s31
    v_mov_b32 v57, s31
    v_mov_b32 v58, s31
    v_mov_b32 v59, s31
    s_lshl_b32 s31, s24, 4
    s_add_u32 s31, s31, {XID}
    v_mov_b32 v8, s31
    v_cmp_ne_u32 vcc, 0, v0
    s_nop 1
    v_cndmask_b32 v8, v8, v9, vcc
    s_barrier
    """)
    with only("eq", 3, 7):
        a("buffer_store_dwordx4 v[56:59], v8, s[4:7], 0 offen sc1")
    srd(16, P_W1, 1605632)
    srd(20, P_W2, 1605632)
    a(f"s_lshl_b32 s35, s24, 7\ns_add_u32 s35, s35, 1792\ns_mul_i32 s32, s3, {8*5376}\ns_add_u32 s35, s35, s32")
    dma_list(8, 25, 35, 33, [(i * 64 * 5376, S_R1 + i * 8192) for i in range(7)], 32)
    a(f"s_movk_i32 s32, 3584\nv_mul_lo_u32 v24, v24, s32\nv_add_u32 v24, v24, v26")
    a(f"s_lshl_b32 s35, s24, 7\ns_mul_i32 s32, s3, {8*3584}\ns_add_u32 s35, s35, s32")
    dma_list(16, 24, 35, 33, [(i * 64 * 3584, S_R0 + i * 8192) for i in range(7)], 32)
    a("s_waitcnt vmcnt(7)\ns_barrier")
    with only("ge", 3, 4):
        a(f"v_add_u32 v36, {S_R1}, v36")
        for i in range(14):
            tr_frag(WF + 4 * i, 36, 36, i * 4096, 128)
            a(f"ds_read_b128 v[{HF+4*i}:{HF+4*i+3}], v27 offset:{i*64}")
        a("s_waitcnt lgkmcnt(0)")
        for i in range(14):
            c = "0" if i == 0 else "v[32:35]"
            a(f"{MF} v[32:35], v[{WF+4*i}:{WF+4*i+3}], v[{HF+4*i}:{HF+4*i+3}], {c}")
        nop(8)
        a("v_cvt_pk_bf16_f32 v37, v32, v33\nv_cvt_pk_bf16_f32 v38, v34, v35")
        a("v_lshl_or_b32 v32, v37, 16, v31\nv_and_or_b32 v33, v37, v29, v31\nv_lshl_or_b32 v34, v38, 16, v31\nv_and_or_b32 v35, v38, v29, v31")
        a("buffer_store_dwordx4 v[32:35], v28, s[4:7], 0 offen sc1")
        stamp(6)
    a("s_barrier")
    a(f"s_mul_i32 s31, s24, {64*896}")
    rows_dma(20, 31, S_R1)
    a("s_mov_b32 s38, 1\ns_mov_b32 s25, 0\ns_mov_b32 s29, 0")

    a.label("L_back")
    stamp(2)
    srd(8, P_OUT, 1792)
    srd(12, P_X, 1792)
    NI = 3
    S_Z = S_SC + 2048
    S_Y = S_Z + 128
    S_ST = S_Y + 4096
    a(f"""
    s_sub_u32 s30, s3, 5
    s_and_b32 s30, s30, 1
    s_mul_i32 s32, s30, {NJ*WR*4}
    s_add_u32 s25, s25, s32
    s_lshl_b32 s32, s30, 7
    s_add_u32 s29, s29, s32
    v_lshlrev_b32 v8, 3, v1
    v_lshlrev_b32 v10, 2, v2
    v_lshlrev_b32 v11, 3, v1
    v_lshl_add_u32 v11, v2, 1, v11
    s_lshl_b32 s34, s30, 7
    v_add_u32 v11, s34, v11
    v_add_u32 v11, {S_O}, v11
    v_and_b32 v27, 1, v1
    v_lshlrev_b32 v25, 7, v27
    v_lshl_add_u32 v24, v2, 3, v25
    v_lshl_add_u32 v25, v2, 4, v25
    v_add_u32 v25, {S_O}, v25
    s_and_b32 s34, s3, 3
    s_lshl_b32 s32, s34, 5
    v_add_u32 v24, s32, v24
    v_add_u32 v24, {S_O}, v24
    v_lshrrev_b32 v26, 1, v1
    v_mov_b32 v32, {S_Z}
    """)
    for ti in range(4):
        a(f"v_cmp_eq_u32 vcc, {ti}, v26\ns_nop 1\nv_cndmask_b32 v{56+ti}, v32, v25, vcc")
    a(f"""
    v_lshl_add_u32 v26, v26, 3, s3
    s_lshl_b32 s32, s38, 12
    s_sub_u32 s32, 8192, s32
    v_mul_lo_u32 v28, v26, s32
    v_lshl_add_u32 v28, v27, 6, v28
    v_lshl_add_u32 v28, v2, 4, v28
    s_lshl_b32 s35, s24, 7
    s_mul_i32 s32, s38, {X5 - X4A}
    s_add_u32 s35, s35, s32
    s_add_u32 s35, s35, {X4A}
    v_add_u32 v28, s35, v28
    v_cmp_le_u32 vcc, 28, v26
    v_mov_b32 v13, {EPOCH}
    v_lshl_add_u32 v18, v17, 2, v2
    v_cndmask_b32 v28, v28, v9, vcc
    v_cmp_le_u32 vcc, 32, v0
    v_mul_u32_u24 v15, 448, v16
    v_add_u32 v15, v15, v18
    v_cndmask_b32 v12, v3, v9, vcc
    v_cmp_ne_u32 vcc, 0, v0
    s_lshl_b32 s32, s24, 4
    v_add_u32 v15, s32, v15
    v_cndmask_b32 v13, v13, v9, vcc
    v_lshlrev_b32 v15, 1, v15
    v_and_b32 v19, 0x18, v0
    v_cmp_ne_u32 vcc, 0, v19
    v_bfe_u32 v19, v0, 3, 1
    v_lshl_add_u32 v22, v19, 1, v16
    v_cndmask_b32 v14, v15, v9, vcc
    v_lshlrev_b32 v22, 5, v22
    v_lshl_add_u32 v22, v18, 1, v22
    s_lshl_b32 s32, s24, 7
    s_add_u32 s32, s32, {X4B}
    v_add_u32 v22, s32, v22
    v_and_b32 v19, 16, v0
    v_cmp_ne_u32 vcc, 0, v19
    v_lshrrev_b32 v29, 1, v2
    v_lshlrev_b32 v29, 7, v29
    v_cndmask_b32 v22, v22, v9, vcc
    v_and_b32 v19, 3, v1
    v_lshl_add_u32 v29, v19, 5, v29
    v_and_b32 v19, 1, v2
    v_lshl_add_u32 v29, v19, 4, v29
    v_add_u32 v29, {S_Y}, v29
    v_lshlrev_b32 v19, 6, v0
    v_add_u32 v19, {XST}, v19
    v_cmp_le_u32 vcc, 56, v0
    v_and_b32 v27, 3, v1
    v_lshlrev_b32 v27, 10, v27
    v_cndmask_b32 v19, v19, v9, vcc
    v_cndmask_b32 v39, 1.0, 0, vcc
    v_lshl_add_u32 v27, v2, 4, v27
    v_add_u32 v27, {S_G}, v27
    v_add_u32 v25, {S_Y}, v3
    v_lshlrev_b32 v26, 3, v0
    v_add_u32 v26, {S_ST}, v26
    s_mov_b32 s{S_LOC}, 0
    s_mov_b32 s62, {f32(1.0/16)}
    s_mov_b32 s39, {X4B}
    v_cmp_le_u32 s[60:61], 8, v1
    v_and_b32 v32, 4, v1
    v_cmp_ne_u32 s[56:57], 0, v32
    v_lshrrev_b32 v32, 2, v1
    v_lshl_add_u32 v24, v32, 1, v24
    v_mov_b32 v32, 0
    v_lshlrev_b32 v33, 2, v0
    v_and_b32 v33, 127, v33
    v_add_u32 v33, {S_Z}, v33
    ds_write_b32 v33, v32
    """)
    GA = 88; GB = 89; GO = 90; XI = 91; XO = 92; UU = 248; VV = 252; TQ = [20, 21, 38, 37]; WT = 72; YF = 128
    def loc2(fn):
        if cfg.LOCAL:
            l1 = a.newlabel("L_loc"); l2 = a.newlabel("L_loc")
            a(f"s_cmp_eq_u32 s{S_LOC}, 0\ns_cbranch_scc1 {l1}")
            fn(""); a(f"s_branch {l2}")
            a.label(l1); fn("sc1"); a.label(l2)
        else:
            nop(2); fn("sc1")
    def gemv_rows(wfbase, local):
        AF = 64
        for ti in range(4):
            for k in range(2):
                if ti == 3 and k == 0: continue
                if ti == 3 and k == 1: continue
                a(f"ds_read_b128 v[{AF+8*ti+4*k}:{AF+8*ti+4*k+3}], v{56+ti} offset:{k*64}")
        for k in range(2): a(f"ds_read_b128 v[{G+4*k}:{G+4*k+3}], v59 offset:{k*64}")
        for i in range(6):
            a(f"s_waitcnt lgkmcnt({7-i})")
            a(f"{MF} v[32:35], v[{wfbase+4*i}:{wfbase+4*i+3}], v[{AF+4*i}:{AF+4*i+3}], {'0' if i == 0 else 'v[32:35]'}")
        with only("lt", 3, 4):
            a("s_waitcnt lgkmcnt(0)")
            for k in range(2):
                a(f"{MF} v[32:35], v[{wfbase+24+4*k}:{wfbase+27+4*k}], v[{G+4*k}:{G+4*k+3}], v[32:35]")
        nop(5)
        with vmem():
            if local: loc2(lambda pol: a(f"buffer_store_dwordx4 v[32:35], v28, s[4:7], 0 offen {pol}"))
            else:
                nop(2); a("buffer_store_dwordx4 v[32:35], v28, s[4:7], 0 offen sc1")
    def gather_reduce(loopname, sbase, lastv, n, R):
        tmo_init()
        if n > 4: a(f"s_add_u32 s35, s{sbase}, 4096")
        a.label(loopname)
        with vmem():
            for i in range(n):
                sb = sbase if i < 4 else 35
                a(f"buffer_load_dwordx4 v[{R+4*i}:{R+4*i+3}], v{lastv if i == n - 1 else 3}, s[4:7], s{sb} offen offset:{(i&3)*1024} sc1")
            a("s_waitcnt vmcnt(0)")
        m = n
        while m > 2:
            for i in range(m // 2):
                for h in range(2):
                    a(f"v_pk_add_f32 v[{R+4*i+2*h}:{R+4*i+2*h+1}], v[{R+4*i+2*h}:{R+4*i+2*h+1}], v[{R+4*(i+m//2)+2*h}:{R+4*(i+m//2)+2*h+1}]")
            m //= 2
        for h in range(2):
            a(f"v_pk_add_f32 v[{32+2*h}:{33+2*h}], v[{R+2*h}:{R+2*h+1}], v[{R+4+2*h}:{R+5+2*h}]")
        a("v_cmp_u_f32 vcc, v32, v34")
        poll_tail(loopname)
        a("s_nop 0\nv_permlane32_swap_b32 v32, v34\nv_permlane32_swap_b32 v33, v35\ns_nop 0")
        a("v_add_f32 v32, v32, v34\nv_add_f32 v33, v33, v35\ns_nop 1")
        a("v_permlane16_swap_b32 v32, v33\ns_nop 0\nv_add_f32 v32, v32, v33\ns_nop 1")
        a("v_add_f32_dpp v32, v32, v32 row_ror:8 row_mask:0xf bank_mask:0xf")
        a("v_cmp_u_f32 vcc, v32, v32")
        poll_tail(loopname)
    def pair_pack(x, t):
        a(f"v_mov_b32 v{t}, v{x}\ns_nop 1\nv_permlane16_swap_b32 v{x}, v{t}\ns_nop 0\nv_cvt_pk_bf16_f32 v{x}, v{x}, v{t}")
    def sum16(x, t):
        a(f"s_nop 1\nv_add_f32_dpp v{x}, v{x}, v{x} quad_perm:[1,0,3,2] row_mask:0xf bank_mask:0xf")
        a(f"s_nop 1\nv_add_f32_dpp v{x}, v{x}, v{x} quad_perm:[2,3,0,1] row_mask:0xf bank_mask:0xf")
        xrow([x], [t])
    dry_begin("L_T")
    a("s_cmp_eq_u32 s38, 1\ns_cbranch_scc1 L_T_fl")
    a("s_sub_u32 s32, s3, 5")
    with only("lt", 32, 2):
        def x3loads():
            for i in range(NI):
                a(f"buffer_load_dwordx4 v[{G+4*i}:{G+4*i+3}], v{12 if i == NI - 1 else 3}, s[4:7], s25 offen offset:{i*1024} sc1")
        tmo_init()
        a.label("L_mlpoll")
        with vmem():
            a("buffer_load_dwordx2 v[32:33], v8, s[4:7], s29 offen sc1")
            x3loads()
            a(f"s_waitcnt vmcnt({NI})")
        a(f"v_cmp_gt_u32 s[34:35], {NJ}, v1\nv_cmp_u_f32 vcc, v32, v33\ns_and_b64 vcc, vcc, s[34:35]")
        poll_tail("L_mlpoll")
        a("v_mov_b32 v34, 0xff800000\nv_cndmask_b32 v32, v34, v32, s[34:35]\nv_cndmask_b32 v33, 0, v33, s[34:35]\nv_mov_b32 v34, v32")
        rowsum([34], "v_max_f32")
        a("v_sub_f32 v32, v32, v34\nv_exp_f32 v32, v32\ns_nop 0\nv_mul_f32 v33, v33, v32")
        rowsum([33])
        a("v_rcp_f32 v33, v33\ns_nop 0\nv_mul_f32 v32, v32, v33")
        for i in range(NI):
            a(f"v_add_u32 v34, {i*16}, v10\nds_bpermute_b32 v{WT+i}, v34, v32")
        a("s_waitcnt lgkmcnt(0)")
        stamp(3)
        tmo_init()
        a("s_branch L_x3chk")
        a.label("L_x3poll")
        with vmem():
            x3loads()
        a.label("L_x3chk")
        with vmem():
            a("s_waitcnt vmcnt(0)")
        for r in range(4):
            for i in range(NI):
                if i == 0: a(f"v_mul_f32 v{32+r}, v{G+r}, v{WT}")
                else: a(f"v_fmac_f32 v{32+r}, v{G+4*i+r}, v{WT+i}")
            if r == 0:
                a("v_cmp_u_f32 vcc, v32, v32")
                poll_tail("L_x3poll")
        a("v_permlane32_swap_b32 v32, v34\ns_nop 0\nv_permlane32_swap_b32 v33, v35\nv_add_f32 v32, v32, v34\nv_add_f32 v33, v33, v35\ns_nop 1")
        a("v_permlane16_swap_b32 v32, v33\ns_nop 0\nv_add_f32 v32, v32, v33")
        a("v_cvt_pk_bf16_f32 v20, v32, v32\nv_cmp_u_f32 vcc, v32, v32")
        poll_tail("L_x3poll")
        a("ds_write_b16 v11, v20\ns_waitcnt lgkmcnt(0)")
        stamp(4)
    barrier()
    gemv_rows(WOF, False)
    stamp(9)
    a("s_branch L_T_skip")
    a.label("L_T_fl")
    with only("eq", 3, 4):
        gather_reduce("L_x4apoll", 36, 3, 8, 192)
        stamp(4)
        rnd1(32)
        a(f"v_mul_f32 v32, v32, v{GA}"); rnd1(32)
        a(f"v_add_f32 v{XO}, v32, v{XI}"); rnd1(XO)
        a(f"v_mul_f32 v32, v{XO}, v{GO}\nv_mov_b32 v{G}, v{XO}\nv_mul_f32 v{G+1}, v{XO}, v{XO}\nv_mov_b32 v33, v32"); rnd1(33)
        a("v_sub_f32 v32, v32, v33\ns_nop 0\nv_cndmask_b32 v33, v33, v32, s[60:61]")
        pair_pack(33, 34)
        with vmem():
            loc2(lambda pol: a(f"buffer_store_dword v33, v22, s[4:7], 0 offen {pol}"))
        for qp in ("[1,0,3,2]", "[2,3,0,1]"):
            a(f"v_add_f32_dpp v{G}, v{G}, v{G} quad_perm:{qp} row_mask:0xf bank_mask:0xf")
            a(f"v_add_f32_dpp v{G+1}, v{G+1}, v{G+1} quad_perm:{qp} row_mask:0xf bank_mask:0xf\ns_nop 0")
        xrow([G, G + 1], [34, 35])
        a(f"v_mul_f32 v34, v{G}, v{G}\nv_fma_f32 v{G+1}, -v34, s62, v{G+1}\nv_max_f32 v{G+1}, 0, v{G+1}")
        with vmem():
            loc2(lambda pol: a(f"buffer_store_dwordx2 v[{G}:{G+1}], v23, s[4:7], 0 offen {pol}"))
        if cfg.FINE: stamp(1)
        tmo_init()
        a.label("L_ypoll")
        R = 192
        with vmem():
            for i in range(4):
                a(f"buffer_load_dwordx4 v[{R+4*i}:{R+4*i+3}], v{12 if i == 3 else 3}, s[4:7], s39 offen offset:{i*1024} sc1")
            a(f"buffer_load_dwordx2 v[{G}:{G+1}], v19, s[4:7], 0 offen sc1")
            a("s_waitcnt vmcnt(0)")
        a(f"v_max3_u32 v32, v{R}, v{R+1}, v{R+2}\nv_max3_u32 v33, v{R+3}, v{R+4}, v{R+5}\nv_max3_u32 v34, v{R+6}, v{R+7}, v{R+8}")
        a(f"v_max3_u32 v32, v32, v{R+9}, v{R+10}\nv_max3_u32 v33, v33, v{R+11}, v{R+12}\nv_max3_u32 v34, v34, v{R+13}, v{R+14}")
        a(f"v_max3_u32 v32, v32, v{R+15}, v{G}\nv_max3_u32 v32, v32, v33, v34\nv_cmp_eq_u32 vcc, -1, v32")
        poll_tail("L_ypoll")
        for i in range(4): a(f"ds_write_b128 v25, v[{R+4*i}:{R+4*i+3}] offset:{i*1024}")
        a(f"ds_write_b64 v26, v[{G}:{G+1}]\ns_waitcnt lgkmcnt(0)")
        if cfg.FINE: stamp(5)
    barrier()
    with only("lt", 3, 4):
        a(f"ds_read_b64 v[{G}:{G+1}], v26")
        for i in range(14):
            a(f"ds_read_b128 v[{YF+4*i}:{YF+4*i+3}], v29 offset:{i*256}")
        st = []
        st.append(f"v_mov_b32 v{G+2}, v{G}"); st.append("N")
        for s_ in (2, 4, 8):
            st.append(f"v_add_f32_dpp v{G+2}, v{G+2}, v{G+2} row_ror:{s_} row_mask:0xf bank_mask:0xf"); st.append("N")
        for w in (16, 32):
            st.append(f"v_mov_b32 v{G+3}, v{G+2}"); st.append("N")
            st.append(f"v_permlane{w}_swap_b32 v{G+2}, v{G+3}"); st.append("N")
            st.append(f"v_add_f32 v{G+2}, v{G+2}, v{G+3}")
        st.append(f"v_mul_f32 v{G+2}, {f32(1.0/448)}, v{G+2}")
        st.append(f"v_fma_f32 v{G+3}, v{G}, s62, -v{G+2}")
        st.append(f"v_mul_f32 v{G+3}, v{G+3}, v{G+3}")
        st.append(f"v_fmac_f32 v{G+1}, 0x41800000, v{G+3}")
        st.append(f"v_mul_f32 v{G+1}, v{G+1}, v39"); st.append("N")
        for s_ in (2, 4, 8):
            st.append(f"v_add_f32_dpp v{G+1}, v{G+1}, v{G+1} row_ror:{s_} row_mask:0xf bank_mask:0xf"); st.append("N")
        for w in (16, 32):
            st.append(f"v_mov_b32 v{G+3}, v{G+1}"); st.append("N")
            st.append(f"v_permlane{w}_swap_b32 v{G+1}, v{G+3}"); st.append("N")
            st.append(f"v_add_f32 v{G+1}, v{G+1}, v{G+3}")
        st.append(f"v_mul_f32 v{G+1}, {f32(1.0/448)}, v{G+1}")
        mi = 0
        def mfma_next():
            nonlocal mi
            c = "0" if mi == 0 else "v[32:35]"
            a(f"s_waitcnt lgkmcnt({13-mi})")
            a(f"{MF} v[32:35], v[{W1F+4*mi}:{W1F+4*mi+3}], v[{YF+4*mi}:{YF+4*mi+3}], {c}")
            mi += 1
        mfma_next()
        for s_ in st:
            if s_ == "N":
                if mi < 14: mfma_next()
                else: a("s_nop 1")
            else: a(s_)
        while mi < 14: mfma_next()
        rnd2(G + 2, G + 1, G + 3)
        a(f"v_add_f32 v{G+1}, {f32(1e-5)}, v{G+1}"); rnd1(G + 1)
        a(f"v_sqrt_f32 v{G+1}, v{G+1}\nv_cndmask_b32 v32, v32, v33, s[56:57]"); rnd1(G + 1)
        a(f"v_rcp_f32 v{G+1}, v{G+1}\nv_cndmask_b32 v34, v34, v35, s[56:57]\nv_cndmask_b32 v32, v32, v34, s[60:61]\ns_nop 1")
        a("v_add_f32_dpp v32, v32, v32 quad_perm:[2,3,0,1] row_mask:0xf bank_mask:0xf")
        a(f"v_fma_f32 v32, -v{G+2}, v{UU}, v32\nv_fma_f32 v32, v32, v{G+1}, v{VV}")
        stamp(3)
        rnd1(32)
        a(f"v_mul_f32 v33, {f32(-LOG2E)}, v32\nv_exp_f32 v33, v33\ns_nop 0\nv_add_f32 v33, 1.0, v33\nv_rcp_f32 v33, v33\ns_nop 0\nv_mul_f32 v32, v32, v33")
        a("v_cvt_pk_bf16_f32 v32, v32, v32")
        a("ds_write_b16 v24, v32\ns_waitcnt lgkmcnt(0)")
    barrier()
    stamp(8)
    gemv_rows(W2F, True)
    if cfg.FINE: stamp(2)
    with only("eq", 3, 4):
        gather_reduce("L_x5poll", 37, 12, 4, 192)
        if cfg.FINE: stamp(7)
        rnd1(32)
        a(f"v_mul_f32 v32, v32, v{GB}"); rnd1(32)
        a(f"v_add_f32 v32, v32, v{XO}")
        pair_pack(32, 34)
        with vmem():
            a("buffer_store_dword v32, v14, s[8:11], 0 offen")
            with only("eq", 24, 0):
                a(f"v_mov_b32 v38, s{S_EP}\nbuffer_store_dword v38, v13, s[4:7], 0 offen")
        stamp(9)
        if cfg.PADTO:
            with vmem():
                a.label("L_pad")
                a(f"s_memrealtime s[42:43]\ns_waitcnt lgkmcnt(0)\ns_sub_u32 s44, s42, s40\ns_cmp_lt_u32 s44, {cfg.PADTO}\ns_cbranch_scc1 L_pad")
    a.label("L_T_skip")
    dry_mid("L_T")
    id_poll("L_idpoll", 28)
    with only("eq", 38, 0):
        a("s_barrier")
        stamp(10)
        rows_frags(WOF, 0)
        a("s_waitcnt lgkmcnt(0)")
    if cfg.LOCAL:
        a(f"""v_readfirstlane_b32 s32, v{G}
        s_nop 1
        v_cmp_ne_u32 vcc, s32, v{G}
        s_cmp_eq_u64 vcc, 0
        s_cselect_b32 s{S_LOC}, 1, 0""")
    with only("eq", 38, 1):
        with only("ge", 3, 4):
            a(f"""
            s_lshr_b32 s31, s3, 1
            s_and_b32 s31, s31, 1
            s_and_b32 s32, s3, 1
            s_lshl_b32 s32, s32, 8
            v_lshlrev_b32 v21, 2, v0
            v_add_u32 v21, s32, v21
            v_min_u32 v21, 444, v21
            v_lshlrev_b32 v20, 1, v21
            v_lshrrev_b32 v38, 6, v21
            v_and_b32 v21, 63, v21
            v_lshlrev_b32 v21, 2, v21
            v_lshl_add_u32 v21, v38, 9, v21
            s_lshl_b32 s32, s31, 8
            s_add_u32 s32, s32, {X0L + 7*512}
            s_lshl_b32 s31, s31, 10
            s_add_u32 s31, s31, {S_G}
            v_add_u32 v20, s31, v20
            s_lshr_b32 s34, s24, 2
            s_lshl_b32 s34, s34, 9
            s_and_b32 s35, s24, 3
            s_lshl_b32 s35, s35, 6
            s_add_u32 s34, s34, s35
            s_add_u32 s34, s34, {X0L}
            v_lshlrev_b32 v38, 8, v16
            v_lshl_add_u32 v38, v18, 2, v38
            v_add_u32 v38, s34, v38
            s_mov_b32 s34, {14*512}
            s_mov_b32 s35, {21*512}
            buffer_load_ushort v{XI}, v15, s[12:15], 0 offen
            """)
            tmo_init()
            a.label("L_x0poll")
            a(f"buffer_load_dwordx4 v[{G}:{G+3}], v21, s[4:7], s32 offen sc1")
            a(f"buffer_load_dwordx4 v[{G+4}:{G+7}], v21, s[4:7], s32 offen offset:{7*512} sc1")
            a(f"buffer_load_dword v{GA}, v38, s[4:7], 0 offen sc1")
            a(f"buffer_load_dword v{GO}, v38, s[4:7], s34 offen sc1")
            a(f"buffer_load_dword v{GB}, v38, s[4:7], s35 offen sc1")
            a("s_waitcnt vmcnt(0)")
            regs_ = [G + i for i in range(8)] + [GA, GB, GO]
            msad_check(regs_, 31, 32, 33)
            a("s_sleep 4")
            poll_tail("L_x0poll")
            for r_ in regs_: a(f"v_and_b32 v{r_}, 0xffff0000, v{r_}")
            for i in range(4): a(f"v_add_f32 v{G+4+i}, 1.0, v{G+4+i}")
            a(f"v_add_f32 v{GO}, 1.0, v{GO}")
            a(f"v_cvt_pk_bf16_f32 v32, v{G+4}, v{G+5}\nv_cvt_pk_bf16_f32 v33, v{G+6}, v{G+7}")
            a(f"v_cvt_pk_bf16_f32 v34, v{G}, v{G+1}\nv_cvt_pk_bf16_f32 v35, v{G+2}, v{G+3}")
            a("ds_write_b64 v20, v[32:33]\nds_write_b64 v20, v[34:35] offset:2048")
            rnd1(GO)
            a(f"v_lshlrev_b32 v{XI}, 16, v{XI}")
        a("s_waitcnt vmcnt(0) lgkmcnt(0)\ns_barrier")
        stamp(10)
        rows_frags(W2F, S_R1)
        with only("lt", 3, 4):
            a("s_waitcnt lgkmcnt(0)\ns_and_b32 s34, s3, 3")
            tr_base_sw(36, 38, 34, 32, S_R0)
            for i in range(14): tr_frag(W1F + 4 * i, 36, 36, i * 4096, 128)
            for i in range(14): a(f"ds_read_b128 v[{YF+4*i}:{YF+4*i+3}], v27 offset:{i*64}")
            a("s_waitcnt lgkmcnt(0)")
            for i in range(14):
                c = "0" if i == 0 else "v[32:35]"
                a(f"{MF} v[32:35], v[{W1F+4*i}:{W1F+4*i+3}], v[{YF+4*i}:{YF+4*i+3}], {c}")
            nop(10)
            a("v_cndmask_b32 v32, v32, v33, s[56:57]\nv_cndmask_b32 v34, v34, v35, s[56:57]\nv_cndmask_b32 v32, v32, v34, s[60:61]\ns_nop 1")
            a(f"v_mov_b32_dpp v{UU}, v32 quad_perm:[0,1,0,1] row_mask:0xf bank_mask:0xf")
            a(f"v_mov_b32_dpp v{VV}, v32 quad_perm:[2,3,2,3] row_mask:0xf bank_mask:0xf")
        a("s_waitcnt lgkmcnt(0)")
    stamp(11)
    dry_end("L_T")
    end_wave()

    if cfg.STAMPS:
        a.label("L_stamps")
        a(f"""
        s_mov_b64 exec, -1
        s_lshl_b32 s28, s2, 3
        s_add_u32 s28, s28, s3
        s_lshl_b32 s28, s28, 7
        s_add_u32 s28, s28, {STAMP_OFF}
        s_waitcnt lgkmcnt(0)
        v_mov_b32 v5, {OOB}
        v_cmp_eq_u32 vcc, 0, v0
        s_nop 1
        v_cndmask_b32 v5, v5, 0, vcc
        """)
        for k in range(0, 12, 2):
            a(f"v_mov_b32 v8, s{SR(k)}\nv_mov_b32 v9, s{SR(k)+1}\nv_mov_b32 v10, s{SR(k+1)}\nv_mov_b32 v11, s{SR(k+1)+1}")
            a(f"buffer_store_dwordx4 v[8:11], v5, s[4:7], s28 offen offset:{k*8}\ns_nop 1")
    a.label("L_exit")
    a("s_endpgm")
    return a

def build(path, **kw):
    cfg = Cfg()
    for k, v in kw.items(): setattr(cfg, k, v)
    a = gen(cfg)
    open(path, "w").write(wrap(a.text(), grid=256, block=512, lds=163840, vgpr=256, sgpr=102))

if __name__ == "__main__":
    build("k22_lqa.s")
    build("k22_laq.s", ORDER='LAQ')
    build("k22_laq_st.s", ORDER='LAQ', STAMPS=True, TMO=20000)
```
